```python
import torch

def _softmax(x, axis=-1):
    return torch.softmax(x, dim=axis)

def _gelu(x):
    return torch.nn.functional.gelu(x, approximate='tanh')

def _silu(x):
    return torch.nn.functional.silu(x)

def _sigmoid(x):
    return torch.sigmoid(x)

def _layernorm(x, axis=-1, eps=1e-05):
    m = x.mean(dim=axis, keepdim=True)
    v = x.var(dim=axis, keepdim=True, unbiased=False)
    return (x - m) / torch.sqrt(v + eps)

def _scatter_add(tgt, idx, src, axis=0):
    return tgt.clone().index_add_(axis, idx, src)

def _segment_sum(src, seg, n):
    out = torch.zeros((n,) + src.shape[1:], dtype=src.dtype)
    return out.index_add_(0, seg, src)

def _pad(x, pw):
    flat = tuple((v for pair in reversed(pw) for v in pair))
    return torch.nn.functional.pad(x, flat)
kernel_name = 'parallel_sum__memory_aug_recurrent_mem_tr__mixer_channel_mlp__prompt'

def setup_inputs():

    _w = lambda a: (lambda t: t.to(torch.bfloat16) if t.is_floating_point() else t)(torch.as_tensor(a))

    def _A_setup():
        B, S, Dm = (1, 2048, 1024)
        H, Dh = (32, 128)
        M, seg = (8, 32)
        seg = min(seg, S)
        S = S // seg * seg
        return {'x': _w((lambda *s: torch.randn(*s, dtype=torch.bfloat16) * 0.05)(B, S, Dm)), 'mem0': _w((lambda *s: torch.randn(*s, dtype=torch.bfloat16) * 0.2)(B, M, Dm)), 'Wq': _w((lambda *s: torch.randn(*s, dtype=torch.bfloat16) * 1.6)(Dm, H, Dh) * Dm ** (-0.5)), 'Wk': _w((lambda *s: torch.randn(*s, dtype=torch.bfloat16) * 1.6)(Dm, H, Dh) * Dm ** (-0.5)), 'Wv': _w((lambda *s: torch.randn(*s, dtype=torch.bfloat16) * 0.2)(Dm, H, Dh) * Dm ** (-0.5)), 'Wo': _w((lambda *s: torch.randn(*s, dtype=torch.bfloat16) * 0.2)(H, Dh, Dm) * (H * Dh) ** (-0.5)), 'seg_len': seg}
    _A_in = _A_setup()

    def _B_setup():
        B, S, D, F = (1, 2048, 1024, 3584)
        return {'x': _w((lambda *s: torch.randn(*s, dtype=torch.bfloat16) * 0.05)(B, S, D)), 'w1': _w((lambda *s: torch.randn(*s, dtype=torch.bfloat16) * 1.6)(D, F) * D ** (-0.5)), 'b1': _w((lambda *s: torch.randn(*s, dtype=torch.bfloat16) * 0.4)(F)), 'w2': _w((lambda *s: torch.randn(*s, dtype=torch.bfloat16) * 0.05)(F, D) * F ** (-0.5)), 'b2': _w((lambda *s: torch.randn(*s, dtype=torch.bfloat16) * 0.05)(D))}
    _B_in = _B_setup()
    return {'A_x': _A_in['x'], 'A_mem0': _A_in['mem0'], 'A_Wq': _A_in['Wq'], 'A_Wk': _A_in['Wk'], 'A_Wv': _A_in['Wv'], 'A_Wo': _A_in['Wo'], 'A_seg_len': _A_in['seg_len'], 'B_x': _B_in['x'], 'B_w1': _B_in['w1'], 'B_b1': _B_in['b1'], 'B_w2': _B_in['w2'], 'B_b2': _B_in['b2']}

def reference(A_x, A_mem0, A_Wq, A_Wk, A_Wv, A_Wo, A_seg_len, B_x, B_w1, B_b1, B_w2, B_b2):

    def _A_ref(x, mem0, Wq, Wk, Wv, Wo, seg_len):
        B, S, Dm = x.shape
        H, Dh = (Wq.shape[1], Wq.shape[2])
        M = mem0.shape[1]
        scale = Dh ** (-0.5)
        n_seg = S // seg_len
        L = M + seg_len
        idx = torch.arange(L)
        mask = (idx[:, None] < M) | (idx[:, None] >= idx[None, :])
        mem = mem0
        outs = []
        for s in range(n_seg):
            xs = x[:, s * seg_len:(s + 1) * seg_len, :].clone()
            h = torch.concatenate([mem, xs], axis=1)
            q = torch.einsum('btd,dhe->bhte', h, Wq)
            k = torch.einsum('btd,dhe->bhte', h, Wk)
            v = torch.einsum('btd,dhe->bhte', h, Wv)
            scores = torch.einsum('bhqe,bhke->bhqk', q, k) * scale
            scores = torch.where(mask[None, None], scores, -1000000000.0)
            p = _softmax(scores, axis=-1)
            o = torch.einsum('bhqk,bhke->bhqe', p, v)
            o = torch.einsum('bhte,hed->btd', o, Wo)
            mem = o[:, :M, :].clone()
            outs.append(o[:, M:, :])
        return torch.concatenate(outs, axis=1)

    def _B_ref(x, w1, b1, w2, b2):
        y = _layernorm(x, axis=-1)
        h = _gelu(torch.einsum('bsd,df->bsf', y, w1) + b1)
        return torch.einsum('bsf,fd->bsd', h, w2) + b2
    x = A_x
    xn = _layernorm(x, axis=-1)
    return x + _A_ref(xn, A_mem0, A_Wq, A_Wk, A_Wv, A_Wo, A_seg_len) + _B_ref(xn, B_w1, B_b1, B_w2, B_b2)
```

```python
from gen_common import *
from rec import SCALE_BITS, LOG2E


def gen_attn(a):
    name = "attn_kernel"
    kernel_header(a, name)
    a("s_cmp_ge_u32 s2, 512")
    a("s_cbranch_scc1 at_done")
    a(f"s_load_dwordx2 s[4:5], s[0:1], {KA['ws']}")
    a("v_and_b32 v1, 63, v0")
    a("v_lshrrev_b32 v2, 6, v0")
    a("v_and_b32 v3, 15, v1")
    a("v_lshrrev_b32 v4, 4, v1")
    a("s_waitcnt lgkmcnt(0)")
    srd(a, 8, 4, 5, WS_SIZE)
    a("s_lshr_b32 s16, s2, 3")
    a("s_and_b32 s17, s2, 7")
    a("s_nop 3")
    a("v_readfirstlane_b32 s18, v2")
    a("s_lshl_b32 s17, s17, 2")
    a("s_nop 3")
    a("s_add_u32 s17, s17, s18")
    a("v_lshlrev_b32 v5, 13, v3")
    a("v_lshlrev_b32 v6, 4, v4")
    a("v_add_u32 v5, v5, v6")
    a("s_lshl_b32 s20, s16, 18")
    a("s_lshl_b32 s21, s17, 8")
    a("s_add_u32 s20, s20, s21")
    a(f"s_add_u32 s21, s20, {WS_Q}")
    a("s_add_u32 s22, s21, 0x20000")
    for ks in range(4):
        a(f"buffer_load_dwordx4 v[{32+4*ks}:{35+4*ks}], v5, s[8:11], s21 offen offset:{ks*64}")
    for ks in range(4):
        a(f"buffer_load_dwordx4 v[{48+4*ks}:{51+4*ks}], v5, s[8:11], s22 offen offset:{ks*64}")
    a(f"s_add_u32 s21, s20, {WS_K}")
    a("s_add_u32 s22, s21, 0x20000")
    for ks in range(4):
        a(f"buffer_load_dwordx4 v[{64+4*ks}:{67+4*ks}], v5, s[8:11], s21 offen offset:{ks*64}")
    for ks in range(4):
        a(f"buffer_load_dwordx4 v[{80+4*ks}:{83+4*ks}], v5, s[8:11], s22 offen offset:{ks*64}")
    a("s_mul_i32 s23, s16, 196608")
    a("s_mul_i32 s24, s17, 6144")
    a("s_add_u32 s23, s23, s24")
    a(f"s_add_u32 s23, s23, {WS_QKVM}")
    a("v_and_b32 v7, 7, v3")
    a("v_lshlrev_b32 v7, 8, v7")
    a("v_add_u32 v7, v7, v6")
    for ks in range(4):
        a(f"buffer_load_dwordx4 v[{96+4*ks}:{99+4*ks}], v7, s[8:11], s23 offen offset:{2048+ks*64}")
    a("v_lshlrev_b32 v8, 6, v3")
    a("v_lshlrev_b32 v9, 3, v4")
    a("v_add_u32 v8, v8, v9")
    a("s_lshl_b32 s24, s16, 18")
    a("s_lshl_b32 s25, s17, 13")
    a("s_add_u32 s24, s24, s25")
    a(f"s_add_u32 s24, s24, {WS_VT}")
    a("s_add_u32 s25, s24, 0x1000")
    for et in range(8):
        so = 24 if et < 4 else 25
        a(f"buffer_load_dwordx2 v[{112+4*et}:{113+4*et}], v8, s[8:11], s{so} offen offset:{(et%4)*1024}")
        a(f"buffer_load_dwordx2 v[{114+4*et}:{115+4*et}], v8, s[8:11], s{so} offen offset:{(et%4)*1024+32}")
    a("v_lshlrev_b32 v9, 4, v3")
    a("v_and_b32 v10, 1, v4")
    a("v_lshlrev_b32 v10, 3, v10")
    a("v_add_u32 v9, v9, v10")
    a("v_add_u32 v9, 0x1000, v9")
    for et in range(8):
        a(f"buffer_load_dwordx2 v[{144+4*et}:{145+4*et}], v9, s[8:11], s23 offen offset:{et*256}")
    for i in range(24):
        a(f"v_mov_b32 v{176+i}, 0")
    a("v_xor_b32 v20, 16, v1")
    a("v_lshlrev_b32 v20, 2, v20")
    a("v_xor_b32 v21, 32, v1")
    a("v_lshlrev_b32 v21, 2, v21")
    a("s_waitcnt vmcnt(24)")
    for mt in range(2):
        for ks in range(4):
            for t in range(3):
                acc = 176 + 12 * mt + 4 * t
                a(f"v_mfma_f32_16x16x32_bf16 v[{acc}:{acc+3}], v[{64+16*t+4*ks}:{67+16*t+4*ks}], v[{32+16*mt+4*ks}:{35+16*mt+4*ks}], v[{acc}:{acc+3}]")
    a("s_waitcnt vmcnt(0)")
    a("v_cmp_gt_u32 vcc, 2, v4")
    a("s_nop 1")
    for et in range(8):
        a(f"v_cndmask_b32 v{144+4*et}, 0, v{144+4*et}, vcc")
        a(f"v_cndmask_b32 v{145+4*et}, 0, v{145+4*et}, vcc")
        a(f"v_mov_b32 v{146+4*et}, 0")
        a(f"v_mov_b32 v{147+4*et}, 0")
    a(f"s_mov_b32 s27, {SCALE_BITS}")
    a(f"s_mov_b32 s28, {LOG2E}")
    a("v_mov_b32 v22, 0xff800000")
    a("v_lshlrev_b32 v23, 13, v3")
    a("v_lshlrev_b32 v24, 3, v4")
    a("v_add_u32 v23, v23, v24")
    a(f"s_add_u32 s29, s20, {WS_O}")
    for mt in range(2):
        b = 176 + 12 * mt
        for i in range(12):
            bf16_round(a, b + i, b + i)
            a(f"v_mul_f32 v{b+i}, s27, v{b+i}")
            bf16_round(a, b + i, b + i)
        a("v_lshlrev_b32 v24, 2, v4")
        for t in range(2):
            for i in range(4):
                c = 16 * t + i - 16 * mt
                a(f"v_add_u32 v25, {c}, v24") if c >= 0 else a(f"v_subrev_u32 v25, {-c}, v24")
                a("v_cmp_le_i32 vcc, v25, v3")
                a("s_nop 1")
                a(f"v_cndmask_b32 v{b+4*t+i}, v22, v{b+4*t+i}, vcc")
        a("v_cmp_gt_u32 vcc, 2, v4")
        a("s_nop 1")
        for i in range(4):
            a(f"v_cndmask_b32 v{b+8+i}, v22, v{b+8+i}, vcc")
        a(f"v_max3_f32 v27, v{b}, v{b+1}, v{b+2}")
        a(f"v_max3_f32 v27, v27, v{b+3}, v{b+4}")
        a(f"v_max3_f32 v27, v27, v{b+5}, v{b+6}")
        a(f"v_max3_f32 v27, v27, v{b+7}, v{b+8}")
        a(f"v_max3_f32 v27, v27, v{b+9}, v{b+10}")
        a(f"v_max_f32 v27, v27, v{b+11}")
        a("ds_bpermute_b32 v28, v20, v27")
        a("s_waitcnt lgkmcnt(0)")
        a("v_max_f32 v27, v27, v28")
        a("ds_bpermute_b32 v28, v21, v27")
        a("s_waitcnt lgkmcnt(0)")
        a("v_max_f32 v27, v27, v28")
        a("v_mov_b32 v28, 0")
        for i in range(12):
            a(f"v_sub_f32 v{b+i}, v{b+i}, v27")
            a(f"v_mul_f32 v{b+i}, s28, v{b+i}")
            a(f"v_exp_f32 v{b+i}, v{b+i}")
            a("s_nop 0")
            a(f"v_add_f32 v28, v28, v{b+i}")
        a("ds_bpermute_b32 v29, v20, v28")
        a("s_waitcnt lgkmcnt(0)")
        a("v_add_f32 v28, v28, v29")
        a("ds_bpermute_b32 v29, v21, v28")
        a("s_waitcnt lgkmcnt(0)")
        a("v_add_f32 v28, v28, v29")
        a("v_rcp_f32 v28, v28")
        a("s_nop 0")
        for i in range(12):
            a(f"v_mul_f32 v{b+i}, v{b+i}, v28")
        for i in range(6):
            a(f"v_cvt_pk_bf16_f32 v{200+i}, v{b+2*i}, v{b+1+2*i}")
        a("v_mov_b32 v206, 0")
        a("v_mov_b32 v207, 0")
        for i in range(32):
            a(f"v_mov_b32 v{32+i}, 0")
        a("s_nop 1")
        for et in range(8):
            a(f"v_mfma_f32_16x16x32_bf16 v[{32+4*et}:{35+4*et}], v[{112+4*et}:{115+4*et}], v[200:203], v[{32+4*et}:{35+4*et}]")
        for et in range(8):
            a(f"v_mfma_f32_16x16x32_bf16 v[{32+4*et}:{35+4*et}], v[{144+4*et}:{147+4*et}], v[204:207], v[{32+4*et}:{35+4*et}]")
        a("s_nop 7")
        a("s_nop 1")
        for et in range(8):
            a(f"v_cvt_pk_bf16_f32 v{208+2*et}, v{32+4*et}, v{33+4*et}")
            a(f"v_cvt_pk_bf16_f32 v{209+2*et}, v{34+4*et}, v{35+4*et}")
            a(f"buffer_store_dwordx2 v[{208+2*et}:{209+2*et}], v23, s[8:11], s29 offen offset:{et*32}")
        a("s_add_u32 s29, s29, 0x20000")
        a("s_nop 1")
    a("at_done:")
    a("s_endpgm")
    return kernel_desc(name, 224, 40)
```

```python
from gen_common import *

LDA_S = 144
LDB_S = 320
LDS_A = 128 * LDA_S
LDS_B = 64 * LDB_S
LDS_STAGE = LDS_A + LDS_B

V_ST = 16
V_F = 48
V_ACC = 80


def gemm_setup_addrs(a):
    a("v_and_b32 v6, 63, v0")
    a("v_lshrrev_b32 v7, 6, v0")
    a("v_lshrrev_b32 v1, 3, v0")
    a(f"v_mul_u32_u24 v2, {LDA_S}, v1")
    a("v_and_b32 v1, 7, v0")
    a("v_lshlrev_b32 v1, 4, v1")
    a("v_add_u32 v2, v2, v1")
    a("v_lshrrev_b32 v1, 4, v0")
    a(f"v_mul_u32_u24 v3, {LDB_S}, v1")
    a("v_and_b32 v1, 15, v0")
    a("v_lshlrev_b32 v1, 4, v1")
    a(f"v_add3_u32 v3, v3, v1, s40")
    a("v_lshrrev_b32 v1, 1, v7")
    a("v_lshlrev_b32 v1, 6, v1")
    a("v_and_b32 v8, 31, v6")
    a("v_add_u32 v1, v1, v8")
    a(f"v_mul_u32_u24 v4, {LDA_S}, v1")
    a("v_lshrrev_b32 v1, 5, v6")
    a("v_lshlrev_b32 v1, 4, v1")
    a("v_add_u32 v4, v4, v1")
    a("v_lshrrev_b32 v1, 5, v6")
    a("v_lshlrev_b32 v1, 3, v1")
    a("v_and_b32 v8, 15, v6")
    a("v_lshrrev_b32 v8, 2, v8")
    a("v_add_u32 v1, v1, v8")
    a(f"v_mul_u32_u24 v5, {LDB_S}, v1")
    a("v_and_b32 v1, 1, v7")
    a("v_lshlrev_b32 v1, 7, v1")
    a("v_bfe_u32 v8, v6, 4, 1")
    a("v_lshlrev_b32 v8, 5, v8")
    a("v_add_u32 v1, v1, v8")
    a("v_and_b32 v8, 3, v6")
    a("v_lshlrev_b32 v8, 3, v8")
    a("v_add3_u32 v5, v5, v1, v8")
    a("v_add_u32 v5, s40, v5")


def gemm_loads(a, sA, sB):
    for i in range(4):
        a(f"buffer_load_dwordx4 v[{V_ST+4*i}:{V_ST+4*i+3}], v10, s[8:11], s{sA+i} offen")
    for i in range(4):
        a(f"buffer_load_dwordx4 v[{V_ST+16+4*i}:{V_ST+16+4*i+3}], v11, s[12:15], s{sB+i} offen")


def gemm_lds_write(a, buf):
    for i in range(4):
        a(f"ds_write_b128 v2, v[{V_ST+4*i}:{V_ST+4*i+3}] offset:{buf*LDS_STAGE + i*32*LDA_S}")
    for i in range(4):
        a(f"ds_write_b128 v3, v[{V_ST+16+4*i}:{V_ST+16+4*i+3}] offset:{buf*LDS_STAGE + i*16*LDB_S}")


def gemm_read_frags(a, buf, ks, fs):
    f = V_F + 16 * fs
    for mi in range(2):
        a(f"ds_read_b128 v[{f+4*mi}:{f+4*mi+3}], v4 offset:{buf*LDS_STAGE + mi*32*LDA_S + ks*32}")
    for ni in range(2):
        for half in range(2):
            a(f"ds_read_b64_tr_b16 v[{f+8+4*ni+2*half}:{f+8+4*ni+2*half+1}], v5 offset:{buf*LDS_STAGE + (ks*16+4*half)*LDB_S + ni*64}")


def gemm_mfmas(a, fs, swapped):
    f = V_F + 16 * fs
    for mi in range(2):
        for ni in range(2):
            acc = V_ACC + 16 * (2 * mi + ni)
            A = f"v[{f+4*mi}:{f+4*mi+3}]"
            B = f"v[{f+8+4*ni}:{f+8+4*ni+3}]"
            if swapped:
                a(f"v_mfma_f32_32x32x16_bf16 v[{acc}:{acc+15}], {B}, {A}, v[{acc}:{acc+15}]")
            else:
                a(f"v_mfma_f32_32x32x16_bf16 v[{acc}:{acc+15}], {A}, {B}, v[{acc}:{acc+15}]")


def gemm_stage(a, buf, swapped, sA, sB, incA, incB):
    gemm_loads(a, sA, sB)
    for i in range(4):
        a(f"s_add_u32 s{sA+i}, s{sA+i}, {incA}")
        a(f"s_add_u32 s{sB+i}, s{sB+i}, s{incB}")
    gemm_read_frags(a, buf, 0, 0)
    for ks in range(4):
        if ks < 3:
            gemm_read_frags(a, buf, ks + 1, (ks + 1) & 1)
            a("s_waitcnt lgkmcnt(6)")
        else:
            a("s_waitcnt lgkmcnt(0)")
        gemm_mfmas(a, ks & 1, swapped)
    a("s_waitcnt vmcnt(0)")
    gemm_lds_write(a, buf ^ 1)
    a("s_waitcnt lgkmcnt(0)")
    a("s_barrier")


def gemm_zero_acc(a):
    for i in range(64):
        a(f"v_mov_b32 v{V_ACC+i}, 0")


def gemm_mainloop(a, nstages, swapped, sA, sB, incA, incB, scnt):
    assert nstages % 2 == 0
    gemm_loads(a, sA, sB)
    for i in range(4):
        a(f"s_add_u32 s{sA+i}, s{sA+i}, {incA}")
        a(f"s_add_u32 s{sB+i}, s{sB+i}, s{incB}")
    a("s_waitcnt vmcnt(0)")
    gemm_lds_write(a, 0)
    a("s_waitcnt lgkmcnt(0)")
    a("s_barrier")
    lp = a.label("gloop")
    a(f"s_mov_b32 s{scnt}, {nstages//2}")
    a(f"{lp}:")
    gemm_stage(a, 0, swapped, sA, sB, incA, incB)
    gemm_stage(a, 1, swapped, sA, sB, incA, incB)
    a(f"s_sub_u32 s{scnt}, s{scnt}, 1")
    a(f"s_cmp_lg_u32 s{scnt}, 0")
    a(f"s_cbranch_scc1 {lp}")


def gelu_tanh(a, v, t0, t1):
    a(f"v_mul_f32 v{t0}, v{v}, v{v}")
    a(f"v_mul_f32 v{t0}, v{t0}, v{v}")
    a(f"v_fma_f32 v{t0}, v{t0}, s44, v{v}")
    a(f"v_mul_f32 v{t0}, s45, v{t0}")
    a(f"v_exp_f32 v{t0}, v{t0}")
    a("s_nop 0")
    a(f"v_add_f32 v{t0}, 1.0, v{t0}")
    a(f"v_rcp_f32 v{t0}, v{t0}")
    a("s_nop 0")
    a(f"v_mul_f32 v{v}, v{v}, v{t0}")


def gen_gemm1(a):
    name = "gemm1_kernel"
    kernel_header(a, name)
    a("s_cmp_ge_u32 s2, 1984")
    a("s_cbranch_scc1 g1_done")
    a(f"s_load_dwordx4 s[16:19], s[0:1], {KA['Wq']}")
    a(f"s_load_dwordx2 s[20:21], s[0:1], {KA['Wv']}")
    a(f"s_load_dwordx4 s[24:27], s[0:1], {KA['w1']}")
    a(f"s_load_dwordx2 s[28:29], s[0:1], {KA['ws']}")
    a("s_and_b32 s3, s2, 15")
    a("s_lshr_b32 s4, s2, 4")
    a("s_lshr_b32 s5, s4, 5")
    a(f"s_mov_b32 s40, {LDS_A}")
    a("s_waitcnt lgkmcnt(0)")
    a("s_cmp_eq_u32 s5, 0")
    a("s_cselect_b32 s6, s16, s18")
    a("s_cselect_b32 s7, s17, s19")
    a("s_cmp_eq_u32 s5, 2")
    a("s_cselect_b32 s6, s20, s6")
    a("s_cselect_b32 s7, s21, s7")
    a("s_cmp_eq_u32 s5, 3")
    a("s_cselect_b32 s6, s24, s6")
    a("s_cselect_b32 s7, s25, s7")
    a("s_mov_b32 s30, 8192")
    a("s_cselect_b32 s30, 7168, s30")
    a(f"s_mov_b32 s31, {8*MB}")
    a(f"s_cselect_b32 s31, {1024*3584*2}, s31")
    a(f"s_cselect_b32 s32, {WS_Y}, {WS_XN}")
    a("s_mov_b32 s12, s6")
    a("s_mov_b32 s13, s7")
    a("s_mov_b32 s14, s31")
    a("s_mov_b32 s15, 0x00020000")
    srd(a, 8, 28, 29, WS_SIZE)
    a("s_and_b32 s33, s4, 31")
    gemm_setup_addrs(a)
    a("v_lshrrev_b32 v1, 3, v0")
    a("s_lshl_b32 s34, s3, 7")
    a("v_add_u32 v1, s34, v1")
    a("v_lshlrev_b32 v10, 11, v1")
    a("v_and_b32 v1, 7, v0")
    a("v_lshlrev_b32 v1, 4, v1")
    a("v_add3_u32 v10, v10, v1, s32")
    a("v_lshrrev_b32 v1, 4, v0")
    a("v_mul_lo_u32 v11, v1, s30")
    a("v_and_b32 v1, 15, v0")
    a("v_lshlrev_b32 v1, 4, v1")
    a("s_lshl_b32 s34, s33, 8")
    a("v_add3_u32 v11, v11, v1, s34")
    for i in range(4):
        a(f"s_mov_b32 s{48+i}, {i*65536}")
        a(f"s_mul_i32 s{52+i}, s30, {16*i}")
    a("s_lshl_b32 s35, s30, 6")
    gemm_zero_acc(a)
    a("s_cmp_eq_u32 s5, 2")
    a("s_cbranch_scc1 g1_vpath")
    gemm_mainloop(a, 16, True, 48, 52, 128, 35, 36)
    a("s_nop 7")
    a("s_nop 7")
    a("s_cmp_eq_u32 s5, 3")
    a("s_cbranch_scc1 g1_mlp")
    a("s_cmp_eq_u32 s5, 0")
    a(f"s_mov_b32 s36, {WS_K}")
    a(f"s_cselect_b32 s36, {WS_Q}, s36")
    a("v_lshrrev_b32 v1, 1, v7")
    a("v_lshlrev_b32 v1, 6, v1")
    a("v_and_b32 v8, 31, v6")
    a("s_lshl_b32 s34, s3, 7")
    a("v_add3_u32 v1, v1, v8, s34")
    a("v_lshlrev_b32 v12, 13, v1")
    a("v_and_b32 v1, 1, v7")
    a("v_lshlrev_b32 v1, 7, v1")
    a("v_lshrrev_b32 v8, 5, v6")
    a("v_lshlrev_b32 v8, 3, v8")
    a("s_lshl_b32 s34, s33, 8")
    a("v_add3_u32 v1, v1, v8, s34")
    a("v_add_u32 v12, v12, v1")
    a("v_add_u32 v13, 0x40000, v12")
    for mi in range(2):
        for ni in range(2):
            for rg in range(4):
                acc = V_ACC + 16 * (2 * mi + ni) + 4 * rg
                t = 16 + 2 * ((ni * 4 + rg) % 8)
                a(f"v_cvt_pk_bf16_f32 v{t}, v{acc}, v{acc+1}")
                a(f"v_cvt_pk_bf16_f32 v{t+1}, v{acc+2}, v{acc+3}")
                a(f"buffer_store_dwordx2 v[{t}:{t+1}], v{12+mi}, s[8:11], s36 offen offset:{ni*64+rg*16}")
    a("s_branch g1_done")
    a("g1_mlp:")
    srd(a, 16, 26, 27, 3584 * 2)
    a("s_mov_b32 s44, 0x3d372713")
    a("s_mov_b32 s45, 0xc0135761")
    a("v_lshrrev_b32 v1, 1, v7")
    a("v_lshlrev_b32 v1, 6, v1")
    a("v_and_b32 v8, 31, v6")
    a("s_lshl_b32 s34, s3, 7")
    a("v_add3_u32 v1, v1, v8, s34")
    a("s_mov_b32 s34, 7168")
    a("v_mul_lo_u32 v12, v1, s34")
    a("v_and_b32 v1, 1, v7")
    a("v_lshlrev_b32 v1, 7, v1")
    a("v_lshrrev_b32 v8, 5, v6")
    a("v_lshlrev_b32 v8, 3, v8")
    a("s_lshl_b32 s34, s33, 8")
    a("v_add3_u32 v14, v1, v8, s34")
    a("v_add_u32 v12, v12, v14")
    a(f"v_add_u32 v13, {32*7168}, v12")
    a(f"s_mov_b32 s36, {WS_H}")
    for ni in range(2):
        for rg in range(4):
            t = 16 + 2 * (ni * 4 + rg)
            a(f"buffer_load_dwordx2 v[{t}:{t+1}], v14, s[16:19], 0 offen offset:{ni*64+rg*16}")
    a("s_waitcnt vmcnt(0)")
    for mi in range(2):
        for ni in range(2):
            for rg in range(4):
                acc = V_ACC + 16 * (2 * mi + ni) + 4 * rg
                bt = 16 + 2 * (ni * 4 + rg)
                for i in range(4):
                    bf16_round(a, acc + i, acc + i)
                    if i % 2 == 0:
                        a(f"v_lshlrev_b32 v32, 16, v{bt + i//2}")
                    else:
                        a(f"v_and_b32 v32, 0xffff0000, v{bt + i//2}")
                    a(f"v_add_f32 v{acc+i}, v{acc+i}, v32")
                    bf16_round(a, acc + i, acc + i)
                    gelu_tanh(a, acc + i, 33, 34)
                a(f"v_cvt_pk_bf16_f32 v36, v{acc}, v{acc+1}")
                a(f"v_cvt_pk_bf16_f32 v37, v{acc+2}, v{acc+3}")
                a(f"buffer_store_dwordx2 v[36:37], v{12+mi}, s[8:11], s36 offen offset:{ni*64+rg*16}")
                a("s_nop 1")
    a("s_branch g1_done")
    a("g1_vpath:")
    gemm_mainloop(a, 16, False, 48, 52, 128, 35, 36)
    a("s_nop 7")
    a("s_nop 7")
    a("v_lshrrev_b32 v1, 1, v7")
    a("v_lshlrev_b32 v1, 1, v1")
    a("s_lshl_b32 s34, s3, 2")
    a("v_add_u32 v1, s34, v1")
    a("v_lshlrev_b32 v1, 5, v1")
    a("v_add_u32 v1, s33, v1")
    a("v_lshlrev_b32 v1, 7, v1")
    a("v_and_b32 v8, 1, v7")
    a("v_lshlrev_b32 v8, 6, v8")
    a("v_and_b32 v9, 31, v6")
    a("v_add3_u32 v1, v1, v8, v9")
    a("v_lshlrev_b32 v12, 6, v1")
    a("v_lshrrev_b32 v8, 5, v6")
    a("v_lshlrev_b32 v8, 3, v8")
    a("v_add_u32 v12, v12, v8")
    a(f"v_add_u32 v13, {32*128*64}, v12")
    a(f"s_mov_b32 s36, {WS_VT}")
    for mi in range(2):
        for ni in range(2):
            for rg in range(4):
                acc = V_ACC + 16 * (2 * mi + ni) + 4 * rg
                t = 16 + 2 * ((ni * 4 + rg) % 8)
                a(f"v_cvt_pk_bf16_f32 v{t}, v{acc}, v{acc+1}")
                a(f"v_cvt_pk_bf16_f32 v{t+1}, v{acc+2}, v{acc+3}")
                a(f"buffer_store_dwordx2 v[{t}:{t+1}], v{12+mi}, s[8:11], s36 offen offset:{ni*32*64+rg*16}")
    a("g1_done:")
    a("s_endpgm")
    return kernel_desc(name, 144, 64)
```

```python
from gen_common import *
import gemm as G1
from gemm import LDA_S, LDB_S, V_ST, V_F, V_ACC

L2_A = 64 * LDA_S
L2_B = 64 * LDB_S
L2_STAGE = L2_A + L2_B


def loads(a, sA, sB):
    for i in range(2):
        a(f"buffer_load_dwordx4 v[{V_ST+4*i}:{V_ST+4*i+3}], v10, s[8:11], s{sA+i} offen")
    for i in range(4):
        a(f"buffer_load_dwordx4 v[{V_ST+16+4*i}:{V_ST+16+4*i+3}], v11, s[12:15], s{sB+i} offen")


def lds_write(a, buf):
    for i in range(2):
        a(f"ds_write_b128 v2, v[{V_ST+4*i}:{V_ST+4*i+3}] offset:{buf*L2_STAGE + i*32*LDA_S}")
    for i in range(4):
        a(f"ds_write_b128 v3, v[{V_ST+16+4*i}:{V_ST+16+4*i+3}] offset:{buf*L2_STAGE + i*16*LDB_S}")


def read_frags(a, buf, ks, fs):
    f = V_F + 16 * fs
    a(f"ds_read_b128 v[{f}:{f+3}], v4 offset:{buf*L2_STAGE + ks*32}")
    for ni in range(2):
        for half in range(2):
            a(f"ds_read_b64_tr_b16 v[{f+8+4*ni+2*half}:{f+8+4*ni+2*half+1}], v5 offset:{buf*L2_STAGE + (ks*16+4*half)*LDB_S + ni*64}")


def mfmas(a, fs):
    f = V_F + 16 * fs
    for ni in range(2):
        acc = V_ACC + 16 * ni
        a(f"v_mfma_f32_32x32x16_bf16 v[{acc}:{acc+15}], v[{f+8+4*ni}:{f+8+4*ni+3}], v[{f}:{f+3}], v[{acc}:{acc+15}]")


def stage(a, buf, sA, sB):
    loads(a, sA, sB)
    for i in range(2):
        a(f"s_add_u32 s{sA+i}, s{sA+i}, 128")
    for i in range(4):
        a(f"s_add_u32 s{sB+i}, s{sB+i}, {64*2048}")
    read_frags(a, buf, 0, 0)
    for ks in range(4):
        if ks < 3:
            read_frags(a, buf, ks + 1, (ks + 1) & 1)
            a("s_waitcnt lgkmcnt(5)")
        else:
            a("s_waitcnt lgkmcnt(0)")
        mfmas(a, ks & 1)
    a("s_waitcnt vmcnt(0)")
    lds_write(a, buf ^ 1)
    a("s_waitcnt lgkmcnt(0)")
    a("s_barrier")


def mainloop(a, nstages, sA, sB, scnt):
    assert nstages % 2 == 0
    for i in range(32):
        a(f"v_mov_b32 v{V_ACC+i}, 0")
    loads(a, sA, sB)
    for i in range(2):
        a(f"s_add_u32 s{sA+i}, s{sA+i}, 128")
    for i in range(4):
        a(f"s_add_u32 s{sB+i}, s{sB+i}, {64*2048}")
    a("s_waitcnt vmcnt(0)")
    lds_write(a, 0)
    a("s_waitcnt lgkmcnt(0)")
    a("s_barrier")
    lp = a.label("g2loop")
    a(f"s_mov_b32 s{scnt}, {nstages//2}")
    a(f"{lp}:")
    stage(a, 0, sA, sB)
    stage(a, 1, sA, sB)
    a(f"s_sub_u32 s{scnt}, s{scnt}, 1")
    a(f"s_cmp_lg_u32 s{scnt}, 0")
    a(f"s_cbranch_scc1 {lp}")
    a("s_nop 7")
    a("s_nop 7")


def gen_gemm2(a):
    name = "gemm2_kernel"
    kernel_header(a, name)
    a("s_cmp_ge_u32 s2, 256")
    a("s_cbranch_scc1 g2_done")
    a(f"s_load_dwordx2 s[16:17], s[0:1], {KA['Wo']}")
    a(f"s_load_dwordx4 s[20:23], s[0:1], {KA['w2']}")
    a(f"s_load_dwordx2 s[24:25], s[0:1], {KA['x']}")
    a(f"s_load_dwordx2 s[26:27], s[0:1], {KA['out']}")
    a(f"s_load_dwordx2 s[28:29], s[0:1], {KA['ws']}")
    a("s_and_b32 s3, s2, 31")
    a("s_lshr_b32 s4, s2, 5")
    a("v_and_b32 v6, 63, v0")
    a("v_lshrrev_b32 v7, 6, v0")
    a("v_lshrrev_b32 v1, 3, v0")
    a(f"v_mul_u32_u24 v2, {LDA_S}, v1")
    a("v_and_b32 v1, 7, v0")
    a("v_lshlrev_b32 v1, 4, v1")
    a("v_add_u32 v2, v2, v1")
    a("v_lshrrev_b32 v1, 4, v0")
    a(f"v_mul_u32_u24 v3, {LDB_S}, v1")
    a("v_and_b32 v1, 15, v0")
    a("v_lshlrev_b32 v1, 4, v1")
    a("v_add_u32 v3, v3, v1")
    a(f"v_add_u32 v3, {L2_A}, v3")
    a("v_lshrrev_b32 v1, 1, v7")
    a("v_lshlrev_b32 v1, 5, v1")
    a("v_and_b32 v8, 31, v6")
    a("v_add_u32 v1, v1, v8")
    a(f"v_mul_u32_u24 v4, {LDA_S}, v1")
    a("v_lshrrev_b32 v1, 5, v6")
    a("v_lshlrev_b32 v1, 4, v1")
    a("v_add_u32 v4, v4, v1")
    a("v_lshrrev_b32 v1, 5, v6")
    a("v_lshlrev_b32 v1, 3, v1")
    a("v_and_b32 v8, 15, v6")
    a("v_lshrrev_b32 v8, 2, v8")
    a("v_add_u32 v1, v1, v8")
    a(f"v_mul_u32_u24 v5, {LDB_S}, v1")
    a("v_and_b32 v1, 1, v7")
    a("v_lshlrev_b32 v1, 7, v1")
    a("v_bfe_u32 v8, v6, 4, 1")
    a("v_lshlrev_b32 v8, 5, v8")
    a("v_add_u32 v1, v1, v8")
    a("v_and_b32 v8, 3, v6")
    a("v_lshlrev_b32 v8, 3, v8")
    a("v_add3_u32 v5, v5, v1, v8")
    a(f"v_add_u32 v5, {L2_A}, v5")
    a("s_waitcnt lgkmcnt(0)")
    srd(a, 8, 28, 29, WS_SIZE)
    a("v_lshrrev_b32 v1, 4, v0")
    a("v_lshlrev_b32 v11, 11, v1")
    a("v_and_b32 v1, 15, v0")
    a("v_lshlrev_b32 v1, 4, v1")
    a("s_lshl_b32 s34, s4, 8")
    a("v_add3_u32 v11, v11, v1, s34")
    srd(a, 12, 16, 17, 8 * MB)
    a("v_lshrrev_b32 v1, 3, v0")
    a("s_lshl_b32 s34, s3, 6")
    a("v_add_u32 v1, s34, v1")
    a("v_lshlrev_b32 v10, 13, v1")
    a("v_and_b32 v1, 7, v0")
    a("v_lshlrev_b32 v1, 4, v1")
    a("v_add_u32 v10, v10, v1")
    for i in range(2):
        a(f"s_mov_b32 s{48+i}, {WS_O + i*32*8192}")
    for i in range(4):
        a(f"s_mov_b32 s{52+i}, {16*i*2048}")
    mainloop(a, 64, 48, 52, 36)
    for i in range(32):
        bf16_round(a, 144 + i, V_ACC + i)
    srd(a, 12, 20, 21, 3584 * 1024 * 2)
    a("v_lshrrev_b32 v1, 3, v0")
    a("s_lshl_b32 s34, s3, 6")
    a("v_add_u32 v1, s34, v1")
    a("s_mov_b32 s34, 7168")
    a("v_mul_lo_u32 v10, v1, s34")
    a("v_and_b32 v1, 7, v0")
    a("v_lshlrev_b32 v1, 4, v1")
    a("v_add_u32 v10, v10, v1")
    for i in range(2):
        a(f"s_mov_b32 s{48+i}, {WS_H + i*32*7168}")
    for i in range(4):
        a(f"s_mov_b32 s{52+i}, {16*i*2048}")
    mainloop(a, 56, 48, 52, 36)
    srd(a, 16, 22, 23, 2048)
    srd(a, 12, 24, 25, 4 * MB)
    srd(a, 20, 26, 27, 4 * MB)
    a("v_and_b32 v1, 1, v7")
    a("v_lshlrev_b32 v1, 7, v1")
    a("v_lshrrev_b32 v8, 5, v6")
    a("v_lshlrev_b32 v8, 3, v8")
    a("s_lshl_b32 s34, s4, 8")
    a("v_add3_u32 v14, v1, v8, s34")
    a("v_lshrrev_b32 v1, 1, v7")
    a("v_lshlrev_b32 v1, 5, v1")
    a("v_and_b32 v8, 31, v6")
    a("s_lshl_b32 s34, s3, 6")
    a("v_add3_u32 v1, v1, v8, s34")
    a("v_lshlrev_b32 v12, 11, v1")
    a("v_add_u32 v12, v12, v14")
    for ni in range(2):
        for rg in range(4):
            t = 16 + 2 * (ni * 4 + rg)
            a(f"buffer_load_dwordx2 v[{t}:{t+1}], v14, s[16:19], 0 offen offset:{ni*64+rg*16}")
            a(f"buffer_load_dwordx2 v[{t+16}:{t+17}], v12, s[12:15], 0 offen offset:{ni*64+rg*16}")
    a("s_waitcnt vmcnt(0)")
    for ni in range(2):
        for rg in range(4):
            acc = V_ACC + 16 * ni + 4 * rg
            sa = 144 + 16 * ni + 4 * rg
            bt = 16 + 2 * (ni * 4 + rg)
            for i in range(4):
                bf16_round(a, acc + i, acc + i)
                if i % 2 == 0:
                    a(f"v_lshlrev_b32 v48, 16, v{bt + i//2}")
                    a(f"v_lshlrev_b32 v49, 16, v{bt + 16 + i//2}")
                else:
                    a(f"v_and_b32 v48, 0xffff0000, v{bt + i//2}")
                    a(f"v_and_b32 v49, 0xffff0000, v{bt + 16 + i//2}")
                a(f"v_add_f32 v{acc+i}, v{acc+i}, v48")
                bf16_round(a, acc + i, acc + i)
                a(f"v_add_f32 v49, v49, v{sa+i}")
                bf16_round(a, 49, 49)
                a(f"v_add_f32 v{acc+i}, v{acc+i}, v49")
            a(f"v_cvt_pk_bf16_f32 v50, v{acc}, v{acc+1}")
            a(f"v_cvt_pk_bf16_f32 v51, v{acc+2}, v{acc+3}")
            a(f"buffer_store_dwordx2 v[50:51], v12, s[20:23], 0 offen offset:{ni*64+rg*16}")
            a("s_nop 1")
    a("g2_done:")
    a("s_endpgm")
    return kernel_desc(name, 176, 64)
```

```python
import sys

NAME = "parallel_sum__memory_aug_recurrent_mem_tr__mixer_channel_mlp__prompt"

MB = 1 << 20
WS_XN = 0
WS_Y = 4 * MB
WS_Q = 8 * MB
WS_K = 24 * MB
WS_VT = 40 * MB
WS_H = 56 * MB
WS_O = 72 * MB
WS_SYNC = 96 * MB
WS_MEM = WS_SYNC
WS_QKVM = WS_SYNC + 2 * MB
WS_PART = WS_SYNC + 14 * MB
WS_FQ = 176 * MB
WS_XID = 188 * MB
WS_SYNC_END = WS_SYNC + 16 * MB
WS_BP = 88 * MB
WS_CNT = 112 * MB
WS_DBG = 128 * MB
WS_SIZE = 256 * MB

KA = dict(x=0, mem0=8, Wq=16, Wk=24, Wv=32, Wo=40, seg=48, Bx=56, w1=64, b1=72, w2=80, b2=88, out=96, dbg=104, ws=112)


class Asm:
    def __init__(self):
        self.lines = []
        self.uid = 0

    def __call__(self, s):
        for l in s.split("\n"):
            self.lines.append("    " + l.strip() if l.strip() and not l.strip().endswith(":") else l.strip())

    def label(self, base):
        self.uid += 1
        return f"{base}_{self.uid}"

    def text(self):
        return "\n".join(self.lines) + "\n"


def srd(a, d, lo, hi, size):
    a(f"s_mov_b32 s{d}, s{lo}")
    a(f"s_mov_b32 s{d+1}, s{hi}")
    a(f"s_mov_b32 s{d+2}, {size}")
    a(f"s_mov_b32 s{d+3}, 0x00020000")


def kernel_header(a, name):
    a.lines.append(f".globl {name}")
    a.lines.append(".p2align 8")
    a.lines.append(f".type {name},@function")
    a.lines.append(f"{name}:")


def kernel_desc(name, vgpr, sgpr, accum=None):
    if accum is None:
        accum = (vgpr + 3) // 4 * 4
    return f""".amdhsa_kernel {name}
  .amdhsa_next_free_vgpr {vgpr}
  .amdhsa_next_free_sgpr {sgpr}
  .amdhsa_accum_offset {accum}
  .amdhsa_group_segment_fixed_size 0
  .amdhsa_kernarg_size 120
  .amdhsa_user_sgpr_count 2
  .amdhsa_user_sgpr_kernarg_segment_ptr 1
  .amdhsa_system_sgpr_workgroup_id_x 1
.end_amdhsa_kernel
"""


def wave_sum(a, v, tmp, sdst):
    for off in (0x041F, 0x081F, 0x101F, 0x201F, 0x401F):
        a(f"ds_swizzle_b32 v{tmp}, v{v} offset:{off:#x}")
        a("s_waitcnt lgkmcnt(0)")
        a(f"v_add_f32 v{v}, v{v}, v{tmp}")
    a("s_nop 1")
    a(f"v_readlane_b32 s{sdst}, v{v}, 32")
    a("s_nop 3")
    a(f"v_add_f32 v{v}, s{sdst}, v{v}")
    a("s_nop 1")
    a(f"v_readlane_b32 s{sdst}, v{v}, 0")
    a("s_nop 3")


def bf16_round(a, vd, vs):
    a(f"v_cvt_pk_bf16_f32 v{vd}, v{vs}, v{vs}")
    a(f"v_lshlrev_b32 v{vd}, 16, v{vd}")
```

```python
from gen_common import *

L_KX = 0
L_VTX = 8704
L_Q = 17920
L_KM = 20096
L_VTM = 22272
L_RED = 24320
L_END = L_RED + 12288
REC_LDS = 36864

V_W1 = 128
V_W2 = 224
SPIN_MAX = 1 << 21
SCALE_BITS = 0x3db504f3
LOG2E = 0x3fb8aa3b


def any_sentinel(a, regs, vt):
    regs = list(regs)
    a(f"v_max_u32 v{vt}, v{regs[0]}, v{regs[1]}")
    i = 2
    while i < len(regs):
        if i + 1 < len(regs):
            a(f"v_max3_u32 v{vt}, v{vt}, v{regs[i]}, v{regs[i+1]}")
            i += 2
        else:
            a(f"v_max_u32 v{vt}, v{vt}, v{regs[i]}")
            i += 1
    a(f"v_cmp_eq_u32 vcc, -1, v{vt}")


def poll_tail(a, top, done):
    a("s_cbranch_vccz " + done)
    a("s_add_u32 s19, s19, 1")
    a(f"s_cmp_lt_u32 s19, s20")
    a("s_cbranch_scc1 " + top)
    a("s_mov_b32 s20, 0")
    a(f"{done}:")


def canon(a, v):
    a(f"v_cmp_eq_u32 vcc, -1, v{v}")
    a("s_nop 1")
    a(f"v_cndmask_b32 v{v}, v{v}, v25, vcc")


def gen_rec(a):
    name = "rec_kernel"
    kernel_header(a, name)
    a("s_cmp_ge_u32 s2, 256")
    a("s_cbranch_scc1 rec_done")
    a(f"s_load_dwordx2 s[4:5], s[0:1], {KA['ws']}")
    a(f"s_load_dwordx2 s[6:7], s[0:1], {KA['mem0']}")
    a(f"s_load_dwordx4 s[24:27], s[0:1], {KA['Wq']}")
    a(f"s_load_dwordx4 s[28:31], s[0:1], {KA['Wv']}")
    a("s_lshr_b32 s16, s2, 3")
    a("s_and_b32 s17, s2, 7")
    a(f"s_mov_b32 s20, {SPIN_MAX}")
    a("s_mov_b32 s47, 0x7fc07fc0")
    a("v_and_b32 v1, 63, v0")
    a("v_lshrrev_b32 v2, 6, v0")
    a("v_and_b32 v3, 15, v1")
    a("v_lshrrev_b32 v4, 4, v1")
    a("s_waitcnt lgkmcnt(0)")
    srd(a, 8, 4, 5, WS_SIZE)
    a("v_lshlrev_b32 v5, 8, v2")
    a("v_lshrrev_b32 v6, 1, v1")
    a("v_add_u32 v5, v5, v6")
    a("v_lshlrev_b32 v5, 13, v5")
    a("v_and_b32 v6, 1, v1")
    a("v_lshlrev_b32 v6, 4, v6")
    a("s_lshl_b32 s21, s16, 8")
    a("s_lshl_b32 s22, s17, 5")
    a("s_add_u32 s21, s21, s22")
    a("v_add3_u32 v5, v5, v6, s21")
    a("v_lshlrev_b32 v7, 13, v2")
    a("v_lshlrev_b32 v6, 4, v1")
    a("v_add_u32 v7, v7, v6")
    a("v_lshlrev_b32 v8, 3, v4")
    a("v_lshrrev_b32 v6, 2, v3")
    a("v_add_u32 v8, v8, v6")
    a("v_lshlrev_b32 v8, 5, v8")
    a("v_and_b32 v6, 3, v1")
    a("v_lshlrev_b32 v6, 3, v6")
    a("v_add_u32 v8, v8, v6")
    a("v_lshlrev_b32 v6, 13, v2")
    a("v_add_u32 v8, v8, v6")
    for mat, (lo, hi) in enumerate(((24, 25), (26, 27), (28, 29))):
        srd(a, 12, lo, hi, 8 * MB)
        for i in range(8):
            a(f"s_mov_b32 s21, {i*262144}")
            a(f"buffer_load_dwordx4 v[{32+4*i}:{35+4*i}], v5, s[12:15], s21 offen")
        a("s_waitcnt vmcnt(0)")
        for i in range(8):
            a(f"ds_write_b128 v7, v[{32+4*i}:{35+4*i}] offset:{i*1024}")
        a("s_waitcnt lgkmcnt(0)")
        for ks in range(8):
            for hf in range(2):
                r = V_W1 + (mat * 8 + ks) * 4 + 2 * hf
                a(f"ds_read_b64_tr_b16 v[{r}:{r+1}], v8 offset:{(32*ks+4*hf)*32}")
        a("s_waitcnt lgkmcnt(0)")
    srd(a, 12, 30, 31, 8 * MB)
    a("v_lshrrev_b32 v5, 2, v1")
    a("s_lshl_b32 s21, s16, 7")
    a("v_add_u32 v5, s21, v5")
    a("v_lshlrev_b32 v5, 11, v5")
    a("v_and_b32 v6, 3, v1")
    a("v_lshlrev_b32 v6, 4, v6")
    a("v_lshlrev_b32 v9, 6, v2")
    a("s_lshl_b32 s21, s17, 8")
    a("v_add3_u32 v5, v5, v6, s21")
    a("v_add_u32 v5, v5, v9")
    for i in range(8):
        a(f"s_mov_b32 s21, {i*16*2048}")
        a(f"buffer_load_dwordx4 v[{32+4*i}:{35+4*i}], v5, s[12:15], s21 offen")
    a("s_waitcnt vmcnt(0)")
    for i in range(8):
        a(f"ds_write_b128 v7, v[{32+4*i}:{35+4*i}] offset:{i*1024}")
    a("v_lshlrev_b32 v8, 2, v4")
    a("v_lshrrev_b32 v6, 2, v3")
    a("v_add_u32 v8, v8, v6")
    a("v_lshlrev_b32 v8, 6, v8")
    a("v_and_b32 v6, 3, v1")
    a("v_lshlrev_b32 v6, 3, v6")
    a("v_add_u32 v8, v8, v6")
    a("v_lshlrev_b32 v6, 13, v2")
    a("v_add_u32 v8, v8, v6")
    a("s_waitcnt lgkmcnt(0)")
    for t in range(2):
        for s in range(4):
            for hf in range(2):
                r = V_W2 + (t * 4 + s) * 4 + 2 * hf
                a(f"ds_read_b64_tr_b16 v[{r}:{r+1}], v8 offset:{(32*s+16*hf)*64 + t*32}")
    a("s_waitcnt lgkmcnt(0)")
    a("s_barrier")
    a("v_lshlrev_b32 v5, 11, v3")
    a("v_lshlrev_b32 v6, 9, v2")
    a("v_lshlrev_b32 v7, 4, v4")
    a("v_add3_u32 v5, v5, v6, v7")
    a("v_lshrrev_b32 v6, 4, v0")
    a("v_lshlrev_b32 v6, 13, v6")
    a("v_and_b32 v7, 15, v0")
    a("v_lshlrev_b32 v7, 4, v7")
    a("s_lshl_b32 s21, s16, 8")
    a("v_add3_u32 v6, v6, v7, s21")
    a("v_lshrrev_b32 v7, 4, v0")
    a("v_mul_u32_u24 v7, 272, v7")
    a("v_and_b32 v8, 15, v0")
    a("v_lshlrev_b32 v8, 4, v8")
    a("v_add_u32 v7, v7, v8")
    a("v_lshlrev_b32 v8, 4, v0")
    a("s_lshl_b32 s21, s16, 13")
    a("v_add_u32 v8, s21, v8")
    a("v_lshrrev_b32 v9, 2, v0")
    a("v_mul_u32_u24 v9, 72, v9")
    a("v_and_b32 v10, 3, v0")
    a("v_lshlrev_b32 v10, 4, v10")
    a(f"v_add3_u32 v9, v9, v10, {L_VTX//1}") if False else None
    a("v_add_u32 v9, v9, v10")
    a(f"v_add_u32 v9, {L_VTX}, v9")
    a("v_mul_u32_u24 v10, 192, v2")
    a("v_add_u32 v10, v10, v1")
    a("v_lshlrev_b32 v10, 4, v10")
    a(f"v_add_u32 v10, {L_RED}, v10")
    a("v_lshrrev_b32 v11, 6, v0")
    a("v_lshlrev_b32 v11, 6, v11")
    a("v_bfe_u32 v12, v0, 1, 2")
    a("v_lshlrev_b32 v12, 4, v12")
    a("v_add_u32 v11, v11, v12")
    a("v_bfe_u32 v12, v0, 3, 3")
    a("v_add_u32 v11, v11, v12")
    a("v_lshlrev_b32 v11, 4, v11")
    a("v_and_b32 v12, 1, v0")
    a("v_lshlrev_b32 v12, 3, v12")
    a("v_add_u32 v11, v11, v12")
    a(f"v_add_u32 v11, {L_RED}, v11")
    a("v_add_u32 v12, 4, v11")
    a("v_lshrrev_b32 v13, 6, v0")
    a("v_lshlrev_b32 v13, 11, v13")
    a("v_bfe_u32 v14, v0, 3, 3")
    a("v_lshlrev_b32 v14, 8, v14")
    a("v_add_u32 v13, v13, v14")
    a("v_and_b32 v14, 7, v0")
    a("v_lshlrev_b32 v14, 2, v14")
    a("s_lshl_b32 s21, s17, 5")
    a("v_add3_u32 v13, v13, v14, s21")
    a("v_subrev_u32 v14, 128, v0")
    a("v_lshrrev_b32 v15, 4, v14")
    a("v_lshlrev_b32 v15, 4, v15")
    a("v_and_b32 v16, 3, v14")
    a("v_lshlrev_b32 v16, 1, v16")
    a("v_add3_u32 v15, v15, v16, 64")
    a("v_add_u32 v15, 64, v15")
    a("v_lshlrev_b32 v15, 4, v15")
    a("v_bfe_u32 v16, v14, 2, 2")
    a("v_lshlrev_b32 v16, 2, v16")
    a("v_add_u32 v15, v15, v16")
    a(f"v_add_u32 v15, {L_RED}, v15")
    a("v_add_u32 v16, 16, v15")
    a("v_lshrrev_b32 v17, 2, v14")
    a("s_lshl_b32 s21, s17, 4")
    a("v_add_u32 v17, s21, v17")
    a("v_lshlrev_b32 v17, 4, v17")
    a("v_and_b32 v18, 3, v14")
    a("v_lshlrev_b32 v18, 2, v18")
    a("v_add3_u32 v17, v17, v18, 0")
    a("v_add_u32 v17, 0x1000, v17")
    a("v_cmp_le_u32 vcc, 128, v0")
    a("s_nop 1")
    a("v_cndmask_b32 v11, v11, v15, vcc")
    a("v_cndmask_b32 v12, v12, v16, vcc")
    a("v_cndmask_b32 v13, v13, v17, vcc")
    a("v_lshlrev_b32 v14, 4, v0")
    a("v_lshrrev_b32 v15, 8, v14")
    a("v_mul_u32_u24 v15, 272, v15")
    a("v_and_b32 v17, 255, v14")
    a("v_add_u32 v15, v15, v17")
    a(f"v_add_u32 v15, {L_Q}, v15")
    a("v_add_u32 v16, 0xc00, v14")
    a("v_lshrrev_b32 v17, 8, v16")
    a("v_mul_u32_u24 v17, 272, v17")
    a("v_and_b32 v18, 255, v16")
    a("v_add_u32 v17, v17, v18")
    a(f"v_add_u32 v17, {L_Q}, v17")
    a(f"v_add_u32 v16, {L_VTM - 4096}, v16")
    a("v_cmp_gt_u32 vcc, 64, v0")
    a("s_nop 1")
    a("v_cndmask_b32 v16, v16, v17, vcc")
    a("v_mul_u32_u24 v17, 272, v3")
    a("v_lshlrev_b32 v18, 4, v4")
    a("v_add_u32 v17, v17, v18")
    a("v_mul_u32_u24 v18, 72, v3")
    a("v_lshlrev_b32 v19, 3, v4")
    a("v_add_u32 v18, v18, v19")
    a(f"v_add_u32 v18, {L_VTX}, v18")
    a("v_lshlrev_b32 v20, 4, v3")
    a("v_add_u32 v19, v19, v20")
    a(f"v_add_u32 v19, {L_VTM}, v19")
    a("v_xor_b32 v20, 16, v1")
    a("v_lshlrev_b32 v20, 2, v20")
    a("v_xor_b32 v21, 32, v1")
    a("v_lshlrev_b32 v21, 2, v21")
    a("v_lshlrev_b32 v22, 3, v2")
    a("v_add_u32 v22, v22, v4")
    a("v_lshlrev_b32 v22, 3, v22")
    a("v_add_u32 v22, v22, v3")
    a("v_lshlrev_b32 v22, 4, v22")
    a("s_lshl_b32 s21, s17, 5")
    a("s_add_u32 s21, s21, s16")
    a("s_lshl_b32 s21, s21, 12")
    a("v_add_u32 v22, s21, v22")
    a("v_lshrrev_b32 v23, 5, v1")
    a("v_lshlrev_b32 v23, 16, v23")
    a("v_and_b32 v24, 31, v1")
    a("v_lshlrev_b32 v24, 2, v24")
    a("s_lshl_b32 s21, s17, 17")
    a("s_lshl_b32 s22, s16, 7")
    a("s_add_u32 s21, s21, s22")
    a("v_add3_u32 v23, v23, v24, s21")
    a("v_bfe_u32 v24, v1, 2, 3")
    a("v_lshlrev_b32 v24, 11, v24")
    a("v_and_b32 v25, 3, v1")
    a("v_lshlrev_b32 v25, 1, v25")
    a("s_lshl_b32 s21, s17, 8")
    a("s_lshl_b32 s22, s16, 3")
    a("s_add_u32 s21, s21, s22")
    a("v_add3_u32 v24, v24, v25, s21")
    a("v_mov_b32 v26, -1")
    a("v_mov_b32 v25, 0x7fc07fc0")
    a("s_mov_b32 s18, 0")
    a("rec_step:")
    a("s_lshl_b32 s21, s18, 18")
    a(f"s_add_u32 s21, s21, {WS_K}")
    a("buffer_load_dwordx4 v[112:115], v6, s[8:11], s21 offen")
    a("s_add_u32 s22, s21, 0x20000")
    a("buffer_load_dwordx4 v[116:119], v6, s[8:11], s22 offen")
    a("s_lshl_b32 s21, s18, 18")
    a(f"s_add_u32 s21, s21, {WS_VT}")
    a("buffer_load_dwordx4 v[120:123], v8, s[8:11], s21 offen")
    a("s_add_u32 s22, s21, 0x1000")
    a("buffer_load_dwordx4 v[124:127], v8, s[8:11], s22 offen")
    a("s_cmp_eq_u32 s18, 0")
    a("s_cselect_b32 s12, s6, s4")
    a("s_cselect_b32 s13, s7, s5")
    a("s_mov_b32 s14, 16384")
    a(f"s_cselect_b32 s14, s14, {WS_SIZE}")
    a("s_mov_b32 s15, 0x00020000")
    a("s_lshl_b32 s21, s18, 14")
    a(f"s_add_u32 s21, s21, {WS_MEM}")
    a("s_cmp_eq_u32 s18, 0")
    a("s_cselect_b32 s21, 0, s21")
    a("s_mov_b32 s19, 0")
    a("v_cmp_gt_u32 vcc, 8, v3")
    a("s_and_saveexec_b64 s[32:33], vcc")
    a("rec_p1:")
    for ks in range(8):
        a(f"buffer_load_dwordx4 v[{32+4*ks}:{35+4*ks}], v5, s[12:15], s21 offen offset:{ks*64} sc1")
    a("s_waitcnt vmcnt(0)")
    a("s_cmp_eq_u32 s18, 0")
    a("s_cbranch_scc1 rec_p1d")
    any_sentinel(a, range(32, 64), 27)
    poll_tail(a, "rec_p1", "rec_p1d")
    a("s_mov_b64 exec, s[32:33]")
    for i in range(12):
        a(f"v_mov_b32 v{64+i}, 0")
    a("s_nop 1")
    for ks in range(8):
        for mat in range(3):
            w = V_W1 + (mat * 8 + ks) * 4
            a(f"v_mfma_f32_16x16x32_bf16 v[{64+4*mat}:{67+4*mat}], v[{w}:{w+3}], v[{32+4*ks}:{35+4*ks}], v[{64+4*mat}:{67+4*mat}]")
    a("ds_write_b128 v7, v[112:115]")
    a(f"ds_write_b128 v7, v[116:119] offset:{16*272}")
    a("ds_write_b128 v9, v[120:123]")
    a(f"ds_write_b128 v9, v[124:127] offset:{64*72}")
    a("s_nop 7")
    for mat in range(3):
        a(f"ds_write_b128 v10, v[{64+4*mat}:{67+4*mat}] offset:{mat*1024}")
    a("s_waitcnt lgkmcnt(0)")
    a("s_barrier")
    a("v_cmp_gt_u32 vcc, 0xc0, v0")
    a("s_and_saveexec_b64 s[32:33], vcc")
    a("s_cbranch_execz rec_skip_pub")
    for wv in range(4):
        a(f"ds_read_b32 v{32+2*wv}, v11 offset:{wv*3072}")
        a(f"ds_read_b32 v{33+2*wv}, v12 offset:{wv*3072}")
    a("s_waitcnt lgkmcnt(0)")
    a("v_add_f32 v32, v32, v34")
    a("v_add_f32 v33, v33, v35")
    a("v_add_f32 v36, v36, v38")
    a("v_add_f32 v37, v37, v39")
    a("v_add_f32 v32, v32, v36")
    a("v_add_f32 v33, v33, v37")
    a("v_cvt_pk_bf16_f32 v32, v32, v33")
    canon(a, 32)
    a("s_mul_i32 s21, s18, 196608")
    a("s_mul_i32 s22, s16, 6144")
    a("s_add_u32 s21, s21, s22")
    a(f"s_add_u32 s21, s21, {WS_QKVM}")
    a("buffer_store_dword v32, v13, s[8:11], s21 offen sc1")
    a("s_mov_b32 s19, 0")
    a("rec_p2:")
    a("buffer_load_dwordx4 v[32:35], v14, s[8:11], s21 offen sc1")
    a("buffer_load_dwordx4 v[36:39], v14, s[8:11], s21 offen offset:3072 sc1")
    a("s_waitcnt vmcnt(0)")
    any_sentinel(a, range(32, 40), 27)
    poll_tail(a, "rec_p2", "rec_p2d")
    a("ds_write_b128 v15, v[32:35]")
    a("ds_write_b128 v16, v[36:39]")
    a("rec_skip_pub:")
    a("s_mov_b64 exec, s[32:33]")
    a("s_waitcnt lgkmcnt(0)")
    a("s_barrier")
    for ks in range(4):
        a(f"ds_read_b128 v[{32+4*ks}:{35+4*ks}], v17 offset:{L_Q + ks*64}")
    for ks in range(4):
        a(f"ds_read_b128 v[{48+4*ks}:{51+4*ks}], v17 offset:{L_KX + ks*64}")
    for ks in range(4):
        a(f"ds_read_b128 v[{64+4*ks}:{67+4*ks}], v17 offset:{L_KX + 16*272 + ks*64}")
    for ks in range(4):
        a(f"ds_read_b128 v[{80+4*ks}:{83+4*ks}], v17 offset:{L_KM + ks*64}")
    for i in range(12):
        a(f"v_mov_b32 v{96+i}, 0")
    a("s_waitcnt lgkmcnt(0)")
    for ks in range(4):
        for t in range(3):
            a(f"v_mfma_f32_16x16x32_bf16 v[{96+4*t}:{99+4*t}], v[{48+16*t+4*ks}:{51+16*t+4*ks}], v[{32+4*ks}:{35+4*ks}], v[{96+4*t}:{99+4*t}]")
    for et in range(8):
        a(f"ds_read_b64 v[{32+4*et}:{33+4*et}], v18 offset:{et*16*72}")
        a(f"ds_read_b64 v[{34+4*et}:{35+4*et}], v18 offset:{et*16*72+32}")
    for et in range(8):
        a(f"ds_read_b64 v[{64+4*et}:{65+4*et}], v19 offset:{et*256}")
        a(f"v_mov_b32 v{66+4*et}, 0")
        a(f"v_mov_b32 v{67+4*et}, 0")
    a("s_nop 4")
    a(f"s_mov_b32 s21, {SCALE_BITS}")
    for i in range(12):
        bf16_round(a, 96 + i, 96 + i)
        a(f"v_mul_f32 v{96+i}, s21, v{96+i}")
        bf16_round(a, 96 + i, 96 + i)
    a("v_cmp_gt_u32 vcc, 2, v4")
    a("v_mov_b32 v27, 0xff800000")
    for i in range(4):
        a(f"v_cndmask_b32 v{104+i}, v27, v{104+i}, vcc")
    a("v_max3_f32 v27, v96, v97, v98")
    a("v_max3_f32 v27, v27, v99, v100")
    a("v_max3_f32 v27, v27, v101, v102")
    a("v_max3_f32 v27, v27, v103, v104")
    a("v_max3_f32 v27, v27, v105, v106")
    a("v_max_f32 v27, v27, v107")
    a("ds_bpermute_b32 v28, v20, v27")
    a("s_waitcnt lgkmcnt(0)")
    a("v_max_f32 v27, v27, v28")
    a("ds_bpermute_b32 v28, v21, v27")
    a("s_waitcnt lgkmcnt(0)")
    a("v_max_f32 v27, v27, v28")
    a(f"s_mov_b32 s21, {LOG2E}")
    a("v_mov_b32 v28, 0")
    for i in range(12):
        a(f"v_sub_f32 v{96+i}, v{96+i}, v27")
        a(f"v_mul_f32 v{96+i}, s21, v{96+i}")
        a(f"v_exp_f32 v{96+i}, v{96+i}")
        a("s_nop 0")
        a(f"v_add_f32 v28, v28, v{96+i}")
    a("ds_bpermute_b32 v29, v20, v28")
    a("s_waitcnt lgkmcnt(0)")
    a("v_add_f32 v28, v28, v29")
    a("ds_bpermute_b32 v29, v21, v28")
    a("s_waitcnt lgkmcnt(0)")
    a("v_add_f32 v28, v28, v29")
    a("v_rcp_f32 v28, v28")
    a("s_nop 0")
    for i in range(12):
        a(f"v_mul_f32 v{96+i}, v{96+i}, v28")
    for i in range(6):
        a(f"v_cvt_pk_bf16_f32 v{108+i}, v{96+2*i}, v{97+2*i}")
    a("v_mov_b32 v114, 0")
    a("v_mov_b32 v115, 0")
    a("s_waitcnt lgkmcnt(0)")
    a("v_cmp_gt_u32 vcc, 2, v4")
    a("s_nop 1")
    for et in range(8):
        a(f"v_cndmask_b32 v{64+4*et}, 0, v{64+4*et}, vcc")
        a(f"v_cndmask_b32 v{65+4*et}, 0, v{65+4*et}, vcc")
    obf = [116, 120, 124, 104]
    for s in range(4):
        for u in range(2):
            et = 2 * s + u
            acc = 96 + 4 * u
            for i in range(4):
                a(f"v_mov_b32 v{acc+i}, 0")
        a("s_nop 1")
        for u in range(2):
            et = 2 * s + u
            acc = 96 + 4 * u
            a(f"v_mfma_f32_16x16x32_bf16 v[{acc}:{acc+3}], v[{32+4*et}:{35+4*et}], v[108:111], v[{acc}:{acc+3}]")
        for u in range(2):
            et = 2 * s + u
            acc = 96 + 4 * u
            a(f"v_mfma_f32_16x16x32_bf16 v[{acc}:{acc+3}], v[{64+4*et}:{67+4*et}], v[112:115], v[{acc}:{acc+3}]")
        a("s_nop 7")
        a("s_nop 1")
        o = obf[s]
        a(f"v_cvt_pk_bf16_f32 v{o}, v96, v97")
        a(f"v_cvt_pk_bf16_f32 v{o+1}, v98, v99")
        a(f"v_cvt_pk_bf16_f32 v{o+2}, v100, v101")
        a(f"v_cvt_pk_bf16_f32 v{o+3}, v102, v103")
    a("s_cmp_eq_u32 s18, 63")
    a("s_cbranch_scc1 rec_done")
    for i in range(8):
        a(f"v_mov_b32 v{32+i}, 0")
    a("s_nop 1")
    for s in range(4):
        for t in range(2):
            w = V_W2 + (t * 4 + s) * 4
            o = obf[s]
            a(f"v_mfma_f32_16x16x32_bf16 v[{32+4*t}:{35+4*t}], v[{w}:{w+3}], v[{o}:{o+3}], v[{32+4*t}:{35+4*t}]")
    a("s_nop 7")
    a("s_nop 1")
    for i in range(8):
        a(f"v_cmp_eq_u32 vcc, -1, v{32+i}")
        a("s_nop 1")
        a(f"v_cndmask_b32 v{32+i}, v{32+i}, v25, vcc")
    a("s_and_b32 s21, s18, 1")
    a("s_lshl_b32 s21, s21, 20")
    a(f"s_add_u32 s21, s21, {WS_PART}")
    a("v_cmp_gt_u32 vcc, 8, v3")
    a("s_and_saveexec_b64 s[32:33], vcc")
    a("buffer_store_dwordx4 v[32:35], v22, s[8:11], s21 offen sc1")
    a("buffer_store_dwordx4 v[36:39], v22, s[8:11], s21 offen offset:512 sc1")
    a("s_mov_b64 exec, s[32:33]")
    a("v_readfirstlane_b32 s22, v2")
    a("s_cmp_lg_u32 s22, 0")
    a("s_cbranch_scc1 rec_next")
    a("s_waitcnt vmcnt(0)")
    a("s_mov_b32 s19, 0")
    a("rec_p3:")
    a("s_mov_b32 s22, s21")
    for i in range(16):
        a(f"buffer_load_dword v{40+i}, v23, s[8:11], s22 offen sc1")
        if i < 15:
            a("s_add_u32 s22, s22, 4096")
    a("s_waitcnt vmcnt(0)")
    any_sentinel(a, range(40, 56), 27)
    poll_tail(a, "rec_p3", "rec_p3d")
    for i in range(1, 16):
        a(f"v_add_f32 v40, v40, v{40+i}")
    a("ds_bpermute_b32 v41, v21, v40")
    a("s_waitcnt lgkmcnt(0)")
    a("v_add_f32 v40, v40, v41")
    a("s_nop 1")
    a("v_mov_b32_dpp v41, v40 quad_perm:[1,0,3,2] row_mask:0xf bank_mask:0xf")
    a("v_cvt_pk_bf16_f32 v40, v40, v41")
    canon(a, 40)
    a("s_add_u32 s22, s18, 1")
    a("s_lshl_b32 s22, s22, 14")
    a(f"s_add_u32 s22, s22, {WS_MEM}")
    a("v_and_b32 v41, 0x21, v1")
    a("v_cmp_eq_u32 vcc, 0, v41")
    a("s_and_saveexec_b64 s[32:33], vcc")
    a("buffer_store_dword v40, v24, s[8:11], s22 offen sc1")
    a("s_mov_b64 exec, s[32:33]")
    a("s_mov_b32 s22, s21")
    for i in range(16):
        a(f"buffer_store_dword v26, v23, s[8:11], s22 offen sc1")
        if i < 15:
            a("s_add_u32 s22, s22, 4096")
    a("rec_next:")
    a("s_add_u32 s18, s18, 1")
    a("s_branch rec_step")
    a("rec_done:")
    a("s_endpgm")
    return kernel_desc(name, 256, 64)
```

```python
import sys
from gen_common import *
from gemm import *
from rec import *
from attn import *
from gemm2 import gen_gemm2, L2_STAGE

def gen_ln(a):
    name = "ln_kernel"
    kernel_header(a, name)
    a("s_cmp_ge_u32 s2, 512")
    a("s_cbranch_scc1 ln_done")
    a(f"s_load_dwordx2 s[4:5], s[0:1], {KA['x']}")
    a(f"s_load_dwordx2 s[6:7], s[0:1], {KA['ws']}")
    a("s_waitcnt lgkmcnt(0)")
    srd(a, 8, 4, 5, 4 * MB)
    srd(a, 12, 6, 7, WS_SIZE)
    a("v_lshrrev_b32 v1, 6, v0")
    a("v_and_b32 v2, 63, v0")
    a("s_lshl_b32 s3, s2, 2")
    a("v_add_u32 v1, s3, v1")
    a("v_lshlrev_b32 v1, 11, v1")
    a("v_lshlrev_b32 v3, 4, v2")
    a("v_add_u32 v1, v1, v3")
    a("buffer_load_dwordx4 v[4:7], v1, s[8:11], 0 offen")
    a("buffer_load_dwordx4 v[8:11], v1, s[8:11], 0 offen offset:1024")
    a("v_mov_b32 v40, -1")
    a("v_mov_b32 v41, -1")
    a("v_mov_b32 v42, -1")
    a("v_mov_b32 v43, -1")
    a("s_lshl_b32 s3, s2, 15")
    a(f"s_add_u32 s3, s3, {WS_SYNC}")
    a("v_lshlrev_b32 v44, 4, v0")
    for i in range(8):
        a(f"buffer_store_dwordx4 v[40:43], v44, s[12:15], s3 offen")
        a("s_add_u32 s3, s3, 4096")
    a("s_waitcnt vmcnt(8)")
    for i in range(8):
        a(f"v_lshlrev_b32 v{12+2*i}, 16, v{4+i}")
        a(f"v_and_b32 v{13+2*i}, 0xffff0000, v{4+i}")
    for rep, dst in ((0, WS_XN), (1, WS_Y)):
        a("v_add_f32 v28, v12, v13")
        for i in range(2, 16):
            a(f"v_add_f32 v28, v28, v{12+i}")
        wave_sum(a, 28, 29, 16)
        a("v_mov_b32 v28, 0x3a800000")
        a("v_mul_f32 v30, s16, v28")
        a("v_sub_f32 v29, v12, v30")
        a("v_mul_f32 v28, v29, v29")
        for i in range(1, 16):
            a(f"v_sub_f32 v29, v{12+i}, v30")
            a("v_fmac_f32 v28, v29, v29")
        wave_sum(a, 28, 29, 17)
        a("v_mov_b32 v28, 0x3a800000")
        a("v_mul_f32 v31, s17, v28")
        bf16_round(a, 30, 30)
        bf16_round(a, 31, 31)
        a("v_add_f32 v31, 0x3727c5ac, v31")
        bf16_round(a, 31, 31)
        a("v_sqrt_f32 v31, v31")
        a("s_nop 0")
        bf16_round(a, 31, 31)
        a("v_rcp_f32 v31, v31")
        a("s_nop 0")
        for i in range(16):
            a(f"v_sub_f32 v29, v{12+i}, v30")
            bf16_round(a, 29, 29)
            a(f"v_mul_f32 v{12+i}, v29, v31")
        for i in range(8):
            a(f"v_cvt_pk_bf16_f32 v{4+i}, v{12+2*i}, v{13+2*i}")
        a(f"s_mov_b32 s3, {dst}")
        a("buffer_store_dwordx4 v[4:7], v1, s[12:15], s3 offen")
        a("buffer_store_dwordx4 v[8:11], v1, s[12:15], s3 offen offset:1024")
        if rep == 0:
            for i in range(8):
                a(f"v_lshlrev_b32 v{12+2*i}, 16, v{4+i}")
                a(f"v_and_b32 v{13+2*i}, 0xffff0000, v{4+i}")
    a("ln_done:")
    a("s_endpgm")
    return kernel_desc(name, 48, 24)


def main():
    a = Asm()
    descs = []
    launches = []
    body = Asm()
    descs.append(gen_ln(body))
    launches.append("; @launch kernel=ln_kernel grid=(512,1,1) block=(256,1,1) lds=0")
    descs.append(gen_gemm1(body))
    launches.append(f"; @launch kernel=gemm1_kernel grid=(1984,1,1) block=(256,1,1) lds={2*LDS_STAGE}")
    descs.append(gen_rec(body))
    launches.append(f"; @launch kernel=rec_kernel grid=(256,1,1) block=(256,1,1) lds={REC_LDS}")
    descs.append(gen_attn(body))
    launches.append(f"; @launch kernel=attn_kernel grid=(512,1,1) block=(256,1,1) lds=0")
    descs.append(gen_gemm2(body))
    launches.append(f"; @launch kernel=gemm2_kernel grid=(256,1,1) block=(256,1,1) lds={2*L2_STAGE}")
    out = []
    out += launches
    out.append('.amdgcn_target "amdgcn-amd-amdhsa--gfx950"')
    out.append(".text")
    out.append(body.text())
    out.append('.section .rodata,"a"')
    for d in descs:
        out.append(".p2align 6")
        out.append(d)
    open(sys.argv[1], "w").write("\n".join(out))


if __name__ == "__main__":
    main()
```

```python
from gen_common import *
from rec import SCALE_BITS, LOG2E


def gen_attn(a):
    name = "attn_kernel"
    kernel_header(a, name)
    a("s_cmp_ge_u32 s2, 512")
    a("s_cbranch_scc1 at_done")
    a(f"s_load_dwordx2 s[4:5], s[0:1], {KA['ws']}")
    a("v_and_b32 v1, 63, v0")
    a("v_lshrrev_b32 v2, 6, v0")
    a("v_and_b32 v3, 15, v1")
    a("v_lshrrev_b32 v4, 4, v1")
    a("s_waitcnt lgkmcnt(0)")
    srd(a, 8, 4, 5, WS_SIZE)
    a("s_lshr_b32 s16, s2, 3")
    a("s_and_b32 s17, s2, 7")
    a("s_nop 3")
    a("v_readfirstlane_b32 s18, v2")
    a("s_lshl_b32 s17, s17, 2")
    a("s_nop 3")
    a("s_add_u32 s17, s17, s18")
    a("v_lshlrev_b32 v5, 13, v3")
    a("v_lshlrev_b32 v6, 4, v4")
    a("v_add_u32 v5, v5, v6")
    a("s_lshl_b32 s20, s16, 18")
    a("s_lshl_b32 s21, s17, 8")
    a("s_add_u32 s20, s20, s21")
    a(f"s_add_u32 s21, s20, {WS_Q}")
    a("s_add_u32 s22, s21, 0x20000")
    for ks in range(4):
        a(f"buffer_load_dwordx4 v[{32+4*ks}:{35+4*ks}], v5, s[8:11], s21 offen offset:{ks*64}")
    for ks in range(4):
        a(f"buffer_load_dwordx4 v[{48+4*ks}:{51+4*ks}], v5, s[8:11], s22 offen offset:{ks*64}")
    a(f"s_add_u32 s21, s20, {WS_K}")
    a("s_add_u32 s22, s21, 0x20000")
    for ks in range(4):
        a(f"buffer_load_dwordx4 v[{64+4*ks}:{67+4*ks}], v5, s[8:11], s21 offen offset:{ks*64}")
    for ks in range(4):
        a(f"buffer_load_dwordx4 v[{80+4*ks}:{83+4*ks}], v5, s[8:11], s22 offen offset:{ks*64}")
    a("s_mul_i32 s23, s16, 196608")
    a("s_mul_i32 s24, s17, 6144")
    a("s_add_u32 s23, s23, s24")
    a(f"s_add_u32 s23, s23, {WS_QKVM}")
    a("v_and_b32 v7, 7, v3")
    a("v_lshlrev_b32 v7, 6, v7")
    a("v_add_u32 v7, v7, v6")
    a("s_add_u32 s26, s23, 0xc00")
    for ks in range(4):
        so = 23 if ks < 2 else 26
        a(f"buffer_load_dwordx4 v[{96+4*ks}:{99+4*ks}], v7, s[8:11], s{so} offen offset:{512+(ks%2)*1536}")
    a("v_lshlrev_b32 v8, 6, v3")
    a("v_lshlrev_b32 v9, 3, v4")
    a("v_add_u32 v8, v8, v9")
    a("s_lshl_b32 s24, s16, 18")
    a("s_lshl_b32 s25, s17, 13")
    a("s_add_u32 s24, s24, s25")
    a(f"s_add_u32 s24, s24, {WS_VT}")
    a("s_add_u32 s25, s24, 0x1000")
    for et in range(8):
        so = 24 if et < 4 else 25
        a(f"buffer_load_dwordx2 v[{112+4*et}:{113+4*et}], v8, s[8:11], s{so} offen offset:{(et%4)*1024}")
        a(f"buffer_load_dwordx2 v[{114+4*et}:{115+4*et}], v8, s[8:11], s{so} offen offset:{(et%4)*1024+32}")
    a("v_lshlrev_b32 v9, 4, v3")
    a("v_and_b32 v10, 1, v4")
    a("v_lshlrev_b32 v10, 3, v10")
    a("v_add_u32 v9, v9, v10")
    for et in range(8):
        so = 23 if et < 4 else 26
        a(f"buffer_load_dwordx2 v[{144+4*et}:{145+4*et}], v9, s[8:11], s{so} offen offset:{1024+((et>>1)%2)*1536+(et&1)*256}")
    for i in range(24):
        a(f"v_mov_b32 v{176+i}, 0")
    a("v_xor_b32 v20, 16, v1")
    a("v_lshlrev_b32 v20, 2, v20")
    a("v_xor_b32 v21, 32, v1")
    a("v_lshlrev_b32 v21, 2, v21")
    a("s_waitcnt vmcnt(24)")
    for mt in range(2):
        for ks in range(4):
            for t in range(3):
                acc = 176 + 12 * mt + 4 * t
                a(f"v_mfma_f32_16x16x32_bf16 v[{acc}:{acc+3}], v[{64+16*t+4*ks}:{67+16*t+4*ks}], v[{32+16*mt+4*ks}:{35+16*mt+4*ks}], v[{acc}:{acc+3}]")
    a("s_waitcnt vmcnt(0)")
    a("v_cmp_gt_u32 vcc, 2, v4")
    a("s_nop 1")
    for et in range(8):
        a(f"v_cndmask_b32 v{144+4*et}, 0, v{144+4*et}, vcc")
        a(f"v_cndmask_b32 v{145+4*et}, 0, v{145+4*et}, vcc")
        a(f"v_mov_b32 v{146+4*et}, 0")
        a(f"v_mov_b32 v{147+4*et}, 0")
    a(f"s_mov_b32 s27, {SCALE_BITS}")
    a(f"s_mov_b32 s28, {LOG2E}")
    a("v_mov_b32 v22, 0xff800000")
    a("v_lshlrev_b32 v23, 13, v3")
    a("v_lshlrev_b32 v24, 3, v4")
    a("v_add_u32 v23, v23, v24")
    a(f"s_add_u32 s29, s20, {WS_O}")
    for mt in range(2):
        b = 176 + 12 * mt
        for i in range(12):
            bf16_round(a, b + i, b + i)
            a(f"v_mul_f32 v{b+i}, s27, v{b+i}")
            bf16_round(a, b + i, b + i)
        a("v_lshlrev_b32 v24, 2, v4")
        for t in range(2):
            for i in range(4):
                c = 16 * t + i - 16 * mt
                a(f"v_add_u32 v25, {c}, v24") if c >= 0 else a(f"v_subrev_u32 v25, {-c}, v24")
                a("v_cmp_le_i32 vcc, v25, v3")
                a("s_nop 1")
                a(f"v_cndmask_b32 v{b+4*t+i}, v22, v{b+4*t+i}, vcc")
        a("v_cmp_gt_u32 vcc, 2, v4")
        a("s_nop 1")
        for i in range(4):
            a(f"v_cndmask_b32 v{b+8+i}, v22, v{b+8+i}, vcc")
        a(f"v_max3_f32 v27, v{b}, v{b+1}, v{b+2}")
        a(f"v_max3_f32 v27, v27, v{b+3}, v{b+4}")
        a(f"v_max3_f32 v27, v27, v{b+5}, v{b+6}")
        a(f"v_max3_f32 v27, v27, v{b+7}, v{b+8}")
        a(f"v_max3_f32 v27, v27, v{b+9}, v{b+10}")
        a(f"v_max_f32 v27, v27, v{b+11}")
        a("ds_bpermute_b32 v28, v20, v27")
        a("s_waitcnt lgkmcnt(0)")
        a("v_max_f32 v27, v27, v28")
        a("ds_bpermute_b32 v28, v21, v27")
        a("s_waitcnt lgkmcnt(0)")
        a("v_max_f32 v27, v27, v28")
        a("v_mov_b32 v28, 0")
        for i in range(12):
            a(f"v_sub_f32 v{b+i}, v{b+i}, v27")
            a(f"v_mul_f32 v{b+i}, s28, v{b+i}")
            a(f"v_exp_f32 v{b+i}, v{b+i}")
            a("s_nop 0")
            a(f"v_add_f32 v28, v28, v{b+i}")
        a("ds_bpermute_b32 v29, v20, v28")
        a("s_waitcnt lgkmcnt(0)")
        a("v_add_f32 v28, v28, v29")
        a("ds_bpermute_b32 v29, v21, v28")
        a("s_waitcnt lgkmcnt(0)")
        a("v_add_f32 v28, v28, v29")
        a("v_rcp_f32 v28, v28")
        a("s_nop 0")
        for i in range(12):
            a(f"v_mul_f32 v{b+i}, v{b+i}, v28")
        for i in range(6):
            a(f"v_cvt_pk_bf16_f32 v{200+i}, v{b+2*i}, v{b+1+2*i}")
        a("v_mov_b32 v206, 0")
        a("v_mov_b32 v207, 0")
        for i in range(32):
            a(f"v_mov_b32 v{32+i}, 0")
        a("s_nop 1")
        for et in range(8):
            a(f"v_mfma_f32_16x16x32_bf16 v[{32+4*et}:{35+4*et}], v[{112+4*et}:{115+4*et}], v[200:203], v[{32+4*et}:{35+4*et}]")
        for et in range(8):
            a(f"v_mfma_f32_16x16x32_bf16 v[{32+4*et}:{35+4*et}], v[{144+4*et}:{147+4*et}], v[204:207], v[{32+4*et}:{35+4*et}]")
        a("s_nop 7")
        a("s_nop 1")
        for et in range(8):
            a(f"v_cvt_pk_bf16_f32 v{208+2*et}, v{32+4*et}, v{33+4*et}")
            a(f"v_cvt_pk_bf16_f32 v{209+2*et}, v{34+4*et}, v{35+4*et}")
            a(f"buffer_store_dwordx2 v[{208+2*et}:{209+2*et}], v23, s[8:11], s29 offen offset:{et*32}")
        a("s_add_u32 s29, s29, 0x20000")
        a("s_nop 1")
    a("at_done:")
    a("s_endpgm")
    return kernel_desc(name, 224, 40)
```

```python
from gen_common import *

LDA_S = 144
LDB_S = 320
LDS_A = 128 * LDA_S
LDS_B = 64 * LDB_S
LDS_STAGE = LDS_A + LDS_B

V_ST = 16
V_F = 48
V_ACC = 80


def gemm_setup_addrs(a):
    a("v_and_b32 v6, 63, v0")
    a("v_lshrrev_b32 v7, 6, v0")
    a("v_lshrrev_b32 v1, 3, v0")
    a(f"v_mul_u32_u24 v2, {LDA_S}, v1")
    a("v_and_b32 v1, 7, v0")
    a("v_lshlrev_b32 v1, 4, v1")
    a("v_add_u32 v2, v2, v1")
    a("v_lshrrev_b32 v1, 4, v0")
    a(f"v_mul_u32_u24 v3, {LDB_S}, v1")
    a("v_and_b32 v1, 15, v0")
    a("v_lshlrev_b32 v1, 4, v1")
    a(f"v_add3_u32 v3, v3, v1, s40")
    a("v_lshrrev_b32 v1, 1, v7")
    a("v_lshlrev_b32 v1, 6, v1")
    a("v_and_b32 v8, 31, v6")
    a("v_add_u32 v1, v1, v8")
    a(f"v_mul_u32_u24 v4, {LDA_S}, v1")
    a("v_lshrrev_b32 v1, 5, v6")
    a("v_lshlrev_b32 v1, 4, v1")
    a("v_add_u32 v4, v4, v1")
    a("v_lshrrev_b32 v1, 5, v6")
    a("v_lshlrev_b32 v1, 3, v1")
    a("v_and_b32 v8, 15, v6")
    a("v_lshrrev_b32 v8, 2, v8")
    a("v_add_u32 v1, v1, v8")
    a(f"v_mul_u32_u24 v5, {LDB_S}, v1")
    a("v_and_b32 v1, 1, v7")
    a("v_lshlrev_b32 v1, 7, v1")
    a("v_bfe_u32 v8, v6, 4, 1")
    a("v_lshlrev_b32 v8, 5, v8")
    a("v_add_u32 v1, v1, v8")
    a("v_and_b32 v8, 3, v6")
    a("v_lshlrev_b32 v8, 3, v8")
    a("v_add3_u32 v5, v5, v1, v8")
    a("v_add_u32 v5, s40, v5")
    if LDSBASE[0]:
        for r in (2, 3, 4, 5):
            a(f"v_add_u32 v{r}, s57, v{r}")


LDSBASE = [False]
AFLAG = [""]
def gemm_loads(a, sA, sB):
    for i in range(4):
        a(f"buffer_load_dwordx4 v[{V_ST+4*i}:{V_ST+4*i+3}], v10, s[8:11], s{sA+i} offen {AFLAG[0]}")
    for i in range(4):
        a(f"buffer_load_dwordx4 v[{V_ST+16+4*i}:{V_ST+16+4*i+3}], v11, s[12:15], s{sB+i} offen")


def gemm_lds_write(a, buf):
    for i in range(4):
        a(f"ds_write_b128 v2, v[{V_ST+4*i}:{V_ST+4*i+3}] offset:{buf*LDS_STAGE + i*32*LDA_S}")
    for i in range(4):
        a(f"ds_write_b128 v3, v[{V_ST+16+4*i}:{V_ST+16+4*i+3}] offset:{buf*LDS_STAGE + i*16*LDB_S}")


def gemm_read_frags(a, buf, ks, fs):
    f = V_F + 16 * fs
    for mi in range(2):
        a(f"ds_read_b128 v[{f+4*mi}:{f+4*mi+3}], v4 offset:{buf*LDS_STAGE + mi*32*LDA_S + ks*32}")
    for ni in range(2):
        for half in range(2):
            a(f"ds_read_b64_tr_b16 v[{f+8+4*ni+2*half}:{f+8+4*ni+2*half+1}], v5 offset:{buf*LDS_STAGE + (ks*16+4*half)*LDB_S + ni*64}")


def gemm_mfmas(a, fs, swapped):
    f = V_F + 16 * fs
    for mi in range(2):
        for ni in range(2):
            acc = V_ACC + 16 * (2 * mi + ni)
            A = f"v[{f+4*mi}:{f+4*mi+3}]"
            B = f"v[{f+8+4*ni}:{f+8+4*ni+3}]"
            if swapped:
                a(f"v_mfma_f32_32x32x16_bf16 v[{acc}:{acc+15}], {B}, {A}, v[{acc}:{acc+15}]")
            else:
                a(f"v_mfma_f32_32x32x16_bf16 v[{acc}:{acc+15}], {A}, {B}, v[{acc}:{acc+15}]")


def gemm_stage(a, buf, swapped, sA, sB, incA, incB):
    gemm_loads(a, sA, sB)
    for i in range(4):
        a(f"s_add_u32 s{sA+i}, s{sA+i}, {incA}")
        a(f"s_add_u32 s{sB+i}, s{sB+i}, s{incB}")
    gemm_read_frags(a, buf, 0, 0)
    for ks in range(4):
        if ks < 3:
            gemm_read_frags(a, buf, ks + 1, (ks + 1) & 1)
            a("s_waitcnt lgkmcnt(6)")
        else:
            a("s_waitcnt lgkmcnt(0)")
        gemm_mfmas(a, ks & 1, swapped)
    a("s_waitcnt vmcnt(0)")
    gemm_lds_write(a, buf ^ 1)
    a("s_waitcnt lgkmcnt(0)")
    a("s_barrier")


def gemm_zero_acc(a):
    for i in range(64):
        a(f"v_mov_b32 v{V_ACC+i}, 0")


def gemm_mainloop(a, nstages, swapped, sA, sB, incA, incB, scnt):
    assert nstages % 2 == 0
    gemm_loads(a, sA, sB)
    for i in range(4):
        a(f"s_add_u32 s{sA+i}, s{sA+i}, {incA}")
        a(f"s_add_u32 s{sB+i}, s{sB+i}, s{incB}")
    a("s_waitcnt vmcnt(0)")
    gemm_lds_write(a, 0)
    a("s_waitcnt lgkmcnt(0)")
    a("s_barrier")
    lp = a.label("gloop")
    a(f"s_mov_b32 s{scnt}, {nstages//2}")
    a(f"{lp}:")
    gemm_stage(a, 0, swapped, sA, sB, incA, incB)
    gemm_stage(a, 1, swapped, sA, sB, incA, incB)
    a(f"s_sub_u32 s{scnt}, s{scnt}, 1")
    a(f"s_cmp_lg_u32 s{scnt}, 0")
    a(f"s_cbranch_scc1 {lp}")


def gelu_tanh(a, v, t0, t1):
    a(f"v_mul_f32 v{t0}, v{v}, v{v}")
    a(f"v_mul_f32 v{t0}, v{t0}, v{v}")
    a(f"v_fma_f32 v{t0}, v{t0}, s44, v{v}")
    a(f"v_mul_f32 v{t0}, s45, v{t0}")
    a(f"v_exp_f32 v{t0}, v{t0}")
    a("s_nop 0")
    a(f"v_add_f32 v{t0}, 1.0, v{t0}")
    a(f"v_rcp_f32 v{t0}, v{t0}")
    a("s_nop 0")
    a(f"v_mul_f32 v{v}, v{v}, v{t0}")


def tile1(a, pfx, types, hflag=""):
    a("s_lshr_b32 s5, s4, 5")
    a(f"s_mov_b32 s40, {LDS_A}")
    a("s_cmp_eq_u32 s5, 0")
    a("s_cselect_b32 s6, s16, s18")
    a("s_cselect_b32 s7, s17, s19")
    a("s_cmp_eq_u32 s5, 2")
    a("s_cselect_b32 s6, s20, s6")
    a("s_cselect_b32 s7, s21, s7")
    a("s_cmp_eq_u32 s5, 3")
    a("s_cselect_b32 s6, s24, s6")
    a("s_cselect_b32 s7, s25, s7")
    a("s_mov_b32 s30, 8192")
    a("s_cselect_b32 s30, 7168, s30")
    a(f"s_mov_b32 s31, {8*MB}")
    a(f"s_cselect_b32 s31, {1024*3584*2}, s31")
    a(f"s_cselect_b32 s32, {WS_Y}, {WS_XN}")
    a("s_mov_b32 s12, s6")
    a("s_mov_b32 s13, s7")
    a("s_mov_b32 s14, s31")
    a("s_mov_b32 s15, 0x00020000")
    srd(a, 8, 28, 29, WS_SIZE)
    a("s_and_b32 s33, s4, 31")
    gemm_setup_addrs(a)
    a("v_lshrrev_b32 v1, 3, v0")
    a("s_lshl_b32 s34, s3, 7")
    a("v_add_u32 v1, s34, v1")
    a("v_lshlrev_b32 v10, 11, v1")
    a("v_and_b32 v1, 7, v0")
    a("v_lshlrev_b32 v1, 4, v1")
    a("v_add3_u32 v10, v10, v1, s32")
    a("v_lshrrev_b32 v1, 4, v0")
    a("v_mul_lo_u32 v11, v1, s30")
    a("v_and_b32 v1, 15, v0")
    a("v_lshlrev_b32 v1, 4, v1")
    a("s_lshl_b32 s34, s33, 8")
    a("v_add3_u32 v11, v11, v1, s34")
    for i in range(4):
        a(f"s_mov_b32 s{48+i}, {i*65536}")
        a(f"s_mul_i32 s{52+i}, s30, {16*i}")
    a("s_lshl_b32 s35, s30, 6")
    gemm_zero_acc(a)
    if 'v' in types:
        a("s_cmp_eq_u32 s5, 2")
        a(f"s_cbranch_scc1 {pfx}vpath")
    gemm_mainloop(a, 16, True, 48, 52, 128, 35, 36)
    a("s_nop 7")
    a("s_nop 7")
    if 'm' in types:
        a("s_cmp_eq_u32 s5, 3")
        a(f"s_cbranch_scc1 {pfx}mlp")
    a("s_cmp_eq_u32 s5, 0")
    a(f"s_mov_b32 s36, {WS_K}")
    a(f"s_cselect_b32 s36, {WS_Q}, s36")
    a("v_lshrrev_b32 v1, 1, v7")
    a("v_lshlrev_b32 v1, 6, v1")
    a("v_and_b32 v8, 31, v6")
    a("s_lshl_b32 s34, s3, 7")
    a("v_add3_u32 v1, v1, v8, s34")
    a("v_lshlrev_b32 v12, 13, v1")
    a("v_and_b32 v1, 1, v7")
    a("v_lshlrev_b32 v1, 7, v1")
    a("v_lshrrev_b32 v8, 5, v6")
    a("v_lshlrev_b32 v8, 3, v8")
    a("s_lshl_b32 s34, s33, 8")
    a("v_add3_u32 v1, v1, v8, s34")
    a("v_add_u32 v12, v12, v1")
    a("v_add_u32 v13, 0x40000, v12")
    for mi in range(2):
        for ni in range(2):
            for rg in range(4):
                acc = V_ACC + 16 * (2 * mi + ni) + 4 * rg
                t = 16 + 2 * ((ni * 4 + rg) % 8)
                a(f"v_cvt_pk_bf16_f32 v{t}, v{acc}, v{acc+1}")
                a(f"v_cvt_pk_bf16_f32 v{t+1}, v{acc+2}, v{acc+3}")
                a(f"buffer_store_dwordx2 v[{t}:{t+1}], v{12+mi}, s[8:11], s36 offen offset:{ni*64+rg*16}")
    a(f"s_branch {pfx}done")
    if 'm' in types:
        a(f"{pfx}mlp:")
        srd(a, 40, 26, 27, 3584 * 2)
        a("s_mov_b32 s44, 0x3d372713")
        a("s_mov_b32 s45, 0xc0135761")
        a("v_lshrrev_b32 v1, 1, v7")
        a("v_lshlrev_b32 v1, 6, v1")
        a("v_and_b32 v8, 31, v6")
        a("s_lshl_b32 s34, s3, 7")
        a("v_add3_u32 v1, v1, v8, s34")
        a("s_mov_b32 s34, 7168")
        a("v_mul_lo_u32 v12, v1, s34")
        a("v_and_b32 v1, 1, v7")
        a("v_lshlrev_b32 v1, 7, v1")
        a("v_lshrrev_b32 v8, 5, v6")
        a("v_lshlrev_b32 v8, 3, v8")
        a("s_lshl_b32 s34, s33, 8")
        a("v_add3_u32 v14, v1, v8, s34")
        a("v_add_u32 v12, v12, v14")
        a(f"v_add_u32 v13, {32*7168}, v12")
        a(f"s_mov_b32 s36, {WS_H}")
        for ni in range(2):
            for rg in range(4):
                t = 16 + 2 * (ni * 4 + rg)
                a(f"buffer_load_dwordx2 v[{t}:{t+1}], v14, s[40:43], 0 offen offset:{ni*64+rg*16}")
        a("s_waitcnt vmcnt(0)")
        for mi in range(2):
            for ni in range(2):
                for rg in range(4):
                    acc = V_ACC + 16 * (2 * mi + ni) + 4 * rg
                    bt = 16 + 2 * (ni * 4 + rg)
                    for i in range(4):
                        bf16_round(a, acc + i, acc + i)
                        if i % 2 == 0:
                            a(f"v_lshlrev_b32 v32, 16, v{bt + i//2}")
                        else:
                            a(f"v_and_b32 v32, 0xffff0000, v{bt + i//2}")
                        a(f"v_add_f32 v{acc+i}, v{acc+i}, v32")
                        bf16_round(a, acc + i, acc + i)
                        gelu_tanh(a, acc + i, 33, 34)
                    a(f"v_cvt_pk_bf16_f32 v36, v{acc}, v{acc+1}")
                    a(f"v_cvt_pk_bf16_f32 v37, v{acc+2}, v{acc+3}")
                    a(f"buffer_store_dwordx2 v[36:37], v{12+mi}, s[8:11], s36 offen offset:{ni*64+rg*16} {hflag}")
                    a("s_nop 1")
        a(f"s_branch {pfx}done")
    if 'v' in types:
        a(f"{pfx}vpath:")
        gemm_mainloop(a, 16, False, 48, 52, 128, 35, 36)
        a("s_nop 7")
        a("s_nop 7")
        a("v_lshrrev_b32 v1, 1, v7")
        a("v_lshlrev_b32 v1, 1, v1")
        a("s_lshl_b32 s34, s3, 2")
        a("v_add_u32 v1, s34, v1")
        a("v_lshlrev_b32 v1, 5, v1")
        a("v_add_u32 v1, s33, v1")
        a("v_lshlrev_b32 v1, 7, v1")
        a("v_and_b32 v8, 1, v7")
        a("v_lshlrev_b32 v8, 6, v8")
        a("v_and_b32 v9, 31, v6")
        a("v_add3_u32 v1, v1, v8, v9")
        a("v_lshlrev_b32 v12, 6, v1")
        a("v_lshrrev_b32 v8, 5, v6")
        a("v_lshlrev_b32 v8, 3, v8")
        a("v_add_u32 v12, v12, v8")
        a(f"v_add_u32 v13, {32*128*64}, v12")
        a(f"s_mov_b32 s36, {WS_VT}")
        for mi in range(2):
            for ni in range(2):
                for rg in range(4):
                    acc = V_ACC + 16 * (2 * mi + ni) + 4 * rg
                    t = 16 + 2 * ((ni * 4 + rg) % 8)
                    a(f"v_cvt_pk_bf16_f32 v{t}, v{acc}, v{acc+1}")
                    a(f"v_cvt_pk_bf16_f32 v{t+1}, v{acc+2}, v{acc+3}")
                    a(f"buffer_store_dwordx2 v[{t}:{t+1}], v{12+mi}, s[8:11], s36 offen offset:{ni*32*64+rg*16}")
    a(f"{pfx}done:")


def load_ptrs1(a):
    a(f"s_load_dwordx4 s[16:19], s[0:1], {KA['Wq']}")
    a(f"s_load_dwordx2 s[20:21], s[0:1], {KA['Wv']}")
    a(f"s_load_dwordx4 s[24:27], s[0:1], {KA['w1']}")
    a(f"s_load_dwordx2 s[28:29], s[0:1], {KA['ws']}")


def gen_gemm1(a):
    name = "gemm1_kernel"
    kernel_header(a, name)
    a("s_cmp_ge_u32 s2, 1024")
    a("s_cbranch_scc1 g1_done")
    load_ptrs1(a)
    a("s_and_b32 s3, s2, 15")
    a("s_lshr_b32 s4, s2, 4")
    a("s_add_u32 s4, s4, 32")
    a("s_waitcnt lgkmcnt(0)")
    tile1(a, "g1_", "kv")
    a("s_endpgm")
    return kernel_desc(name, 144, 64)


def gen_worker(a):
    LDSBASE[0] = True
    a("v_lshrrev_b32 v1, 8, v0")
    a("s_nop 1")
    a("v_readfirstlane_b32 s57, v1")
    a("v_and_b32 v0, 0xff, v0")
    a("s_sub_u32 s60, s2, 128")
    a("s_lshl_b32 s60, s60, 1")
    a("s_add_u32 s60, s60, s57")
    a(f"s_mul_i32 s57, s57, {2*LDS_STAGE}")
    load_ptrs1(a)
    a(f"s_load_dwordx2 s[62:63], s[0:1], {KA['dbg']}")
    a(f"s_load_dwordx4 s[64:67], s[0:1], {KA['w2']}")
    a("s_mov_b32 s61, s60")
    a("s_waitcnt lgkmcnt(0)")
    a("wk_loop:")
    a("s_cmp_ge_u32 s61, 960")
    a("s_cbranch_scc1 wk_mlp2")
    a("s_and_b32 s3, s61, 15")
    a("s_lshr_b32 s4, s61, 4")
    a("s_add_u32 s5, s4, 96")
    a("s_sub_u32 s6, s4, 28")
    a("s_cmp_lt_u32 s4, 28")
    a("s_cselect_b32 s4, s5, s6")
    tile1(a, "wk_", "qm", hflag="sc1")
    a("s_cmp_ge_u32 s61, 448")
    a("s_cbranch_scc1 wk_nosig")
    a("s_waitcnt vmcnt(0)")
    a("s_barrier")
    srd(a, 40, 62, 63, 256)
    a("v_mov_b32 v1, 1")
    a("s_lshl_b32 s5, s3, 2")
    a("v_mov_b32 v2, s5")
    a("v_cmp_eq_u32 vcc, 0, v0")
    a("s_and_saveexec_b64 s[46:47], vcc")
    a("buffer_atomic_add v1, v2, s[40:43], 0 offen sc1")
    a("s_mov_b64 exec, s[46:47]")
    a("wk_nosig:")
    a("s_barrier")
    a("s_add_u32 s61, s61, 256")
    a("s_branch wk_loop")
    a("wk_mlp2:")
    a("s_cmp_ge_u32 s60, 128")
    a("s_cbranch_scc1 rec_done")
    a("s_and_b32 s3, s60, 15")
    a("s_lshr_b32 s4, s60, 4")
    srd(a, 40, 62, 63, 256)
    a("s_lshl_b32 s5, s3, 2")
    a("v_mov_b32 v2, s5")
    a("s_mov_b32 s6, 0")
    a("wk_wait:")
    a("buffer_load_dword v1, v2, s[40:43], 0 offen sc1")
    a("s_waitcnt vmcnt(0)")
    a("v_cmp_le_u32 vcc, 28, v1")
    a("s_cbranch_vccnz wk_go")
    a("s_sleep 8")
    a("s_add_u32 s6, s6, 1")
    a("s_cmp_lt_u32 s6, 0x100000")
    a("s_cbranch_scc1 wk_wait")
    a("wk_go:")
    a("s_barrier")
    a(f"s_mov_b32 s40, {LDS_A}")
    srd(a, 8, 28, 29, WS_SIZE)
    srd(a, 12, 64, 65, 3584 * 1024 * 2)
    gemm_setup_addrs(a)
    a("v_lshrrev_b32 v1, 3, v0")
    a("s_lshl_b32 s34, s3, 7")
    a("v_add_u32 v1, s34, v1")
    a("s_mov_b32 s34, 7168")
    a("v_mul_lo_u32 v10, v1, s34")
    a("v_and_b32 v1, 7, v0")
    a("v_lshlrev_b32 v1, 4, v1")
    a("v_add_u32 v10, v10, v1")
    a("v_lshrrev_b32 v1, 4, v0")
    a("v_lshlrev_b32 v11, 11, v1")
    a("v_and_b32 v1, 15, v0")
    a("v_lshlrev_b32 v1, 4, v1")
    a("s_lshl_b32 s34, s4, 8")
    a("v_add3_u32 v11, v11, v1, s34")
    for i in range(4):
        a(f"s_mov_b32 s{48+i}, {WS_H + i*32*7168}")
        a(f"s_mov_b32 s{52+i}, {16*i*2048}")
    a(f"s_mov_b32 s35, {64*2048}")
    gemm_zero_acc(a)
    AFLAG[0] = "sc1"
    gemm_mainloop(a, 56, True, 48, 52, 128, 35, 36)
    AFLAG[0] = ""
    a("s_nop 7")
    a("s_nop 7")
    srd(a, 40, 66, 67, 2048)
    a("v_lshrrev_b32 v1, 1, v7")
    a("v_lshlrev_b32 v1, 6, v1")
    a("v_and_b32 v8, 31, v6")
    a("s_lshl_b32 s34, s3, 7")
    a("v_add3_u32 v1, v1, v8, s34")
    a("v_lshlrev_b32 v12, 11, v1")
    a("v_and_b32 v1, 1, v7")
    a("v_lshlrev_b32 v1, 7, v1")
    a("v_lshrrev_b32 v8, 5, v6")
    a("v_lshlrev_b32 v8, 3, v8")
    a("s_lshl_b32 s34, s4, 8")
    a("v_add3_u32 v14, v1, v8, s34")
    a("v_add_u32 v12, v12, v14")
    a(f"v_add_u32 v13, {32*2048}, v12")
    a(f"s_mov_b32 s36, {WS_BP}")
    for ni in range(2):
        for rg in range(4):
            t = 16 + 2 * (ni * 4 + rg)
            a(f"buffer_load_dwordx2 v[{t}:{t+1}], v14, s[40:43], 0 offen offset:{ni*64+rg*16}")
    a("s_waitcnt vmcnt(0)")
    for mi in range(2):
        for ni in range(2):
            for rg in range(4):
                acc = V_ACC + 16 * (2 * mi + ni) + 4 * rg
                bt = 16 + 2 * (ni * 4 + rg)
                for i in range(4):
                    bf16_round(a, acc + i, acc + i)
                    if i % 2 == 0:
                        a(f"v_lshlrev_b32 v32, 16, v{bt + i//2}")
                    else:
                        a(f"v_and_b32 v32, 0xffff0000, v{bt + i//2}")
                    a(f"v_add_f32 v{acc+i}, v{acc+i}, v32")
                a(f"v_cvt_pk_bf16_f32 v36, v{acc}, v{acc+1}")
                a(f"v_cvt_pk_bf16_f32 v37, v{acc+2}, v{acc+3}")
                a(f"buffer_store_dwordx2 v[36:37], v{12+mi}, s[8:11], s36 offen offset:{ni*64+rg*16}")
                a("s_nop 1")
    LDSBASE[0] = False
    a("s_branch rec_done")
```

```python
from gen_common import *
import gemm as G1
from gemm import LDA_S, LDB_S, V_ST, V_F, V_ACC

L2_A = 64 * LDA_S
L2_B = 64 * LDB_S
L2_STAGE = L2_A + L2_B


def loads(a, sA, sB):
    for i in range(2):
        a(f"buffer_load_dwordx4 v[{V_ST+4*i}:{V_ST+4*i+3}], v10, s[8:11], s{sA+i} offen")
    for i in range(4):
        a(f"buffer_load_dwordx4 v[{V_ST+16+4*i}:{V_ST+16+4*i+3}], v11, s[12:15], s{sB+i} offen")


def lds_write(a, buf):
    for i in range(2):
        a(f"ds_write_b128 v2, v[{V_ST+4*i}:{V_ST+4*i+3}] offset:{buf*L2_STAGE + i*32*LDA_S}")
    for i in range(4):
        a(f"ds_write_b128 v3, v[{V_ST+16+4*i}:{V_ST+16+4*i+3}] offset:{buf*L2_STAGE + i*16*LDB_S}")


def read_frags(a, buf, ks, fs):
    f = V_F + 16 * fs
    a(f"ds_read_b128 v[{f}:{f+3}], v4 offset:{buf*L2_STAGE + ks*32}")
    for ni in range(2):
        for half in range(2):
            a(f"ds_read_b64_tr_b16 v[{f+8+4*ni+2*half}:{f+8+4*ni+2*half+1}], v5 offset:{buf*L2_STAGE + (ks*16+4*half)*LDB_S + ni*64}")


def mfmas(a, fs):
    f = V_F + 16 * fs
    for ni in range(2):
        acc = V_ACC + 16 * ni
        a(f"v_mfma_f32_32x32x16_bf16 v[{acc}:{acc+15}], v[{f+8+4*ni}:{f+8+4*ni+3}], v[{f}:{f+3}], v[{acc}:{acc+15}]")


def stage(a, buf, sA, sB):
    loads(a, sA, sB)
    for i in range(2):
        a(f"s_add_u32 s{sA+i}, s{sA+i}, 128")
    for i in range(4):
        a(f"s_add_u32 s{sB+i}, s{sB+i}, {64*2048}")
    read_frags(a, buf, 0, 0)
    for ks in range(4):
        if ks < 3:
            read_frags(a, buf, ks + 1, (ks + 1) & 1)
            a("s_waitcnt lgkmcnt(5)")
        else:
            a("s_waitcnt lgkmcnt(0)")
        mfmas(a, ks & 1)
    a("s_waitcnt vmcnt(0)")
    lds_write(a, buf ^ 1)
    a("s_waitcnt lgkmcnt(0)")
    a("s_barrier")


def mainloop(a, nstages, sA, sB, scnt):
    assert nstages % 2 == 0
    for i in range(32):
        a(f"v_mov_b32 v{V_ACC+i}, 0")
    loads(a, sA, sB)
    for i in range(2):
        a(f"s_add_u32 s{sA+i}, s{sA+i}, 128")
    for i in range(4):
        a(f"s_add_u32 s{sB+i}, s{sB+i}, {64*2048}")
    a("s_waitcnt vmcnt(0)")
    lds_write(a, 0)
    a("s_waitcnt lgkmcnt(0)")
    a("s_barrier")
    lp = a.label("g2loop")
    a(f"s_mov_b32 s{scnt}, {nstages//2}")
    a(f"{lp}:")
    stage(a, 0, sA, sB)
    stage(a, 1, sA, sB)
    a(f"s_sub_u32 s{scnt}, s{scnt}, 1")
    a(f"s_cmp_lg_u32 s{scnt}, 0")
    a(f"s_cbranch_scc1 {lp}")
    a("s_nop 7")
    a("s_nop 7")


def gen_gemm2(a):
    name = "gemm2_kernel"
    kernel_header(a, name)
    a("s_cmp_ge_u32 s2, 256")
    a("s_cbranch_scc1 g2_done")
    a(f"s_load_dwordx2 s[16:17], s[0:1], {KA['Wo']}")
    a(f"s_load_dwordx4 s[20:23], s[0:1], {KA['w2']}")
    a(f"s_load_dwordx2 s[24:25], s[0:1], {KA['x']}")
    a(f"s_load_dwordx2 s[26:27], s[0:1], {KA['out']}")
    a(f"s_load_dwordx2 s[28:29], s[0:1], {KA['ws']}")
    a("s_and_b32 s3, s2, 31")
    a("s_lshr_b32 s4, s2, 5")
    a("v_and_b32 v6, 63, v0")
    a("v_lshrrev_b32 v7, 6, v0")
    a("v_lshrrev_b32 v1, 3, v0")
    a(f"v_mul_u32_u24 v2, {LDA_S}, v1")
    a("v_and_b32 v1, 7, v0")
    a("v_lshlrev_b32 v1, 4, v1")
    a("v_add_u32 v2, v2, v1")
    a("v_lshrrev_b32 v1, 4, v0")
    a(f"v_mul_u32_u24 v3, {LDB_S}, v1")
    a("v_and_b32 v1, 15, v0")
    a("v_lshlrev_b32 v1, 4, v1")
    a("v_add_u32 v3, v3, v1")
    a(f"v_add_u32 v3, {L2_A}, v3")
    a("v_lshrrev_b32 v1, 1, v7")
    a("v_lshlrev_b32 v1, 5, v1")
    a("v_and_b32 v8, 31, v6")
    a("v_add_u32 v1, v1, v8")
    a(f"v_mul_u32_u24 v4, {LDA_S}, v1")
    a("v_lshrrev_b32 v1, 5, v6")
    a("v_lshlrev_b32 v1, 4, v1")
    a("v_add_u32 v4, v4, v1")
    a("v_lshrrev_b32 v1, 5, v6")
    a("v_lshlrev_b32 v1, 3, v1")
    a("v_and_b32 v8, 15, v6")
    a("v_lshrrev_b32 v8, 2, v8")
    a("v_add_u32 v1, v1, v8")
    a(f"v_mul_u32_u24 v5, {LDB_S}, v1")
    a("v_and_b32 v1, 1, v7")
    a("v_lshlrev_b32 v1, 7, v1")
    a("v_bfe_u32 v8, v6, 4, 1")
    a("v_lshlrev_b32 v8, 5, v8")
    a("v_add_u32 v1, v1, v8")
    a("v_and_b32 v8, 3, v6")
    a("v_lshlrev_b32 v8, 3, v8")
    a("v_add3_u32 v5, v5, v1, v8")
    a(f"v_add_u32 v5, {L2_A}, v5")
    a("s_waitcnt lgkmcnt(0)")
    srd(a, 8, 28, 29, WS_SIZE)
    a("v_lshrrev_b32 v1, 4, v0")
    a("v_lshlrev_b32 v11, 11, v1")
    a("v_and_b32 v1, 15, v0")
    a("v_lshlrev_b32 v1, 4, v1")
    a("s_lshl_b32 s34, s4, 8")
    a("v_add3_u32 v11, v11, v1, s34")
    srd(a, 12, 16, 17, 8 * MB)
    a("v_lshrrev_b32 v1, 3, v0")
    a("s_lshl_b32 s34, s3, 6")
    a("v_add_u32 v1, s34, v1")
    a("v_lshlrev_b32 v10, 13, v1")
    a("v_and_b32 v1, 7, v0")
    a("v_lshlrev_b32 v1, 4, v1")
    a("v_add_u32 v10, v10, v1")
    for i in range(2):
        a(f"s_mov_b32 s{48+i}, {WS_O + i*32*8192}")
    for i in range(4):
        a(f"s_mov_b32 s{52+i}, {16*i*2048}")
    mainloop(a, 64, 48, 52, 36)
    for i in range(32):
        bf16_round(a, 144 + i, V_ACC + i)
    srd(a, 12, 24, 25, 4 * MB)
    srd(a, 20, 26, 27, 4 * MB)
    a("v_and_b32 v1, 1, v7")
    a("v_lshlrev_b32 v1, 7, v1")
    a("v_lshrrev_b32 v8, 5, v6")
    a("v_lshlrev_b32 v8, 3, v8")
    a("s_lshl_b32 s34, s4, 8")
    a("v_add3_u32 v14, v1, v8, s34")
    a("v_lshrrev_b32 v1, 1, v7")
    a("v_lshlrev_b32 v1, 5, v1")
    a("v_and_b32 v8, 31, v6")
    a("s_lshl_b32 s34, s3, 6")
    a("v_add3_u32 v1, v1, v8, s34")
    a("v_lshlrev_b32 v12, 11, v1")
    a("v_add_u32 v12, v12, v14")
    a(f"s_mov_b32 s36, {WS_BP}")
    for ni in range(2):
        for rg in range(4):
            t = 16 + 2 * (ni * 4 + rg)
            a(f"buffer_load_dwordx2 v[{t}:{t+1}], v12, s[8:11], s36 offen offset:{ni*64+rg*16}")
            a(f"buffer_load_dwordx2 v[{t+16}:{t+17}], v12, s[12:15], 0 offen offset:{ni*64+rg*16}")
    a("s_waitcnt vmcnt(0)")
    for ni in range(2):
        for rg in range(4):
            acc = V_ACC + 16 * ni + 4 * rg
            sa = 144 + 16 * ni + 4 * rg
            bt = 16 + 2 * (ni * 4 + rg)
            for i in range(4):
                if i % 2 == 0:
                    a(f"v_lshlrev_b32 v48, 16, v{bt + i//2}")
                    a(f"v_lshlrev_b32 v49, 16, v{bt + 16 + i//2}")
                else:
                    a(f"v_and_b32 v48, 0xffff0000, v{bt + i//2}")
                    a(f"v_and_b32 v49, 0xffff0000, v{bt + 16 + i//2}")
                a(f"v_add_f32 v49, v49, v{sa+i}")
                bf16_round(a, 49, 49)
                a(f"v_add_f32 v{acc+i}, v48, v49")
            a(f"v_cvt_pk_bf16_f32 v50, v{acc}, v{acc+1}")
            a(f"v_cvt_pk_bf16_f32 v51, v{acc+2}, v{acc+3}")
            a(f"buffer_store_dwordx2 v[50:51], v12, s[20:23], 0 offen offset:{ni*64+rg*16}")
            a("s_nop 1")
    a("g2_done:")
    a("s_endpgm")
    return kernel_desc(name, 176, 64)
```

```python
from gen_common import *

L_KX = 0
L_VTX = 8704
L_Q = 17920
L_KM = 20096
L_VTM = 22272
L_OX = 24320
L_RED = 28416
L_END = L_RED + 49152
REC_LDS = 2 * 77824

V_W1 = 128
V_W2 = 224
SPIN_MAX = 1 << 21
SCALE_BITS = 0x3db504f3
LOG2E = 0x3fb8aa3b
STAMP = False
SLEEP = 0


def stamp(a, idx):
    if not STAMP:
        return
    a(f"s_memtime s[{50+2*idx}:{51+2*idx}]")


def any_sentinel(a, regs, vt):
    regs = list(regs)
    a(f"v_max_u32 v{vt}, v{regs[0]}, v{regs[1]}")
    i = 2
    while i < len(regs):
        if i + 1 < len(regs):
            a(f"v_max3_u32 v{vt}, v{vt}, v{regs[i]}, v{regs[i+1]}")
            i += 2
        else:
            a(f"v_max_u32 v{vt}, v{vt}, v{regs[i]}")
            i += 1
    a(f"v_cmp_eq_u32 vcc, -1, v{vt}")


def poll_tail(a, top, done):
    a("s_cbranch_vccz " + done)
    a("s_add_u32 s19, s19, 1")
    if SLEEP:
        a(f"s_sleep {SLEEP}")
    a(f"s_cmp_lt_u32 s19, s20")
    a("s_cbranch_scc1 " + top)
    a("s_mov_b32 s20, 0")
    a(f"{done}:")


def canon(a, v):
    a(f"v_cmp_eq_u32 vcc, -1, v{v}")
    a("s_nop 1")
    a(f"v_cndmask_b32 v{v}, v{v}, v25, vcc")


def xlane_reduce(a, op, v, t):
    a(f"v_mov_b32 v{t}, v{v}")
    a("s_nop 1")
    a(f"v_permlane16_swap_b32 v{v}, v{t}")
    a(f"{op} v{v}, v{v}, v{t}")
    a(f"v_mov_b32 v{t}, v{v}")
    a("s_nop 1")
    a(f"v_permlane32_swap_b32 v{v}, v{t}")
    a(f"{op} v{v}, v{v}, v{t}")


def gen_rec(a):
    name = "rec_kernel"
    kernel_header(a, name)
    a("s_cmp_ge_u32 s2, 256")
    a("s_cbranch_scc1 rec_done")
    a("s_cmp_ge_u32 s2, 128")
    a("s_cbranch_scc1 rec_worker")
    a(f"s_load_dwordx2 s[4:5], s[0:1], {KA['ws']}")
    a(f"s_load_dwordx2 s[6:7], s[0:1], {KA['mem0']}")
    a(f"s_load_dwordx4 s[24:27], s[0:1], {KA['Wq']}")
    a(f"s_load_dwordx4 s[28:31], s[0:1], {KA['Wv']}")
    a("s_lshr_b32 s16, s2, 2")
    a("s_and_b32 s17, s2, 3")
    a(f"s_mov_b32 s20, {SPIN_MAX}")
    a("v_and_b32 v1, 63, v0")
    a("v_lshrrev_b32 v2, 6, v0")
    a("v_and_b32 v3, 15, v1")
    a("v_lshrrev_b32 v4, 4, v1")
    a("s_waitcnt lgkmcnt(0)")
    srd(a, 8, 4, 5, WS_SIZE)
    a("v_lshlrev_b32 v5, 7, v2")
    a("v_lshrrev_b32 v6, 2, v1")
    a("v_add_u32 v5, v5, v6")
    a("v_lshlrev_b32 v5, 13, v5")
    a("v_and_b32 v6, 3, v1")
    a("v_lshlrev_b32 v6, 4, v6")
    a("s_lshl_b32 s21, s16, 8")
    a("s_lshl_b32 s22, s17, 6")
    a("s_add_u32 s21, s21, s22")
    a("v_add3_u32 v5, v5, v6, s21")
    a("v_lshlrev_b32 v7, 13, v2")
    a("v_lshlrev_b32 v6, 4, v1")
    a("v_add_u32 v7, v7, v6")
    a("v_lshlrev_b32 v8, 3, v4")
    a("v_lshrrev_b32 v6, 2, v3")
    a("v_add_u32 v8, v8, v6")
    a("v_lshlrev_b32 v8, 6, v8")
    a("v_and_b32 v6, 3, v1")
    a("v_lshlrev_b32 v6, 3, v6")
    a("v_add_u32 v8, v8, v6")
    a("v_lshlrev_b32 v6, 13, v2")
    a("v_add_u32 v8, v8, v6")
    for mat, (lo, hi) in enumerate(((24, 25), (26, 27), (28, 29))):
        srd(a, 12, lo, hi, 8 * MB)
        for i in range(8):
            a(f"s_mov_b32 s21, {i*16*8192}")
            a(f"buffer_load_dwordx4 v[{32+4*i}:{35+4*i}], v5, s[12:15], s21 offen")
        a("s_waitcnt vmcnt(0)")
        for i in range(8):
            a(f"ds_write_b128 v7, v[{32+4*i}:{35+4*i}] offset:{i*1024}")
        a("s_waitcnt lgkmcnt(0)")
        for nt in range(2):
            for ks in range(4):
                for hf in range(2):
                    r = V_W1 + ((mat * 2 + nt) * 4 + ks) * 4 + 2 * hf
                    a(f"ds_read_b64_tr_b16 v[{r}:{r+1}], v8 offset:{(32*ks+4*hf)*64 + nt*32}")
        a("s_waitcnt lgkmcnt(0)")
    srd(a, 12, 30, 31, 8 * MB)
    a("v_lshrrev_b32 v5, 2, v1")
    a("s_lshl_b32 s21, s16, 7")
    a("v_add_u32 v5, s21, v5")
    a("v_lshlrev_b32 v5, 11, v5")
    a("v_and_b32 v6, 3, v1")
    a("v_lshlrev_b32 v6, 4, v6")
    a("v_lshlrev_b32 v9, 6, v2")
    a("s_lshl_b32 s21, s17, 9")
    a("v_add3_u32 v5, v5, v6, s21")
    a("v_add_u32 v5, v5, v9")
    for i in range(8):
        a(f"s_mov_b32 s21, {i*16*2048}")
        a(f"buffer_load_dwordx4 v[{32+4*i}:{35+4*i}], v5, s[12:15], s21 offen")
    a("s_waitcnt vmcnt(0)")
    for i in range(8):
        a(f"ds_write_b128 v7, v[{32+4*i}:{35+4*i}] offset:{i*1024}")
    a("v_lshlrev_b32 v8, 2, v4")
    a("v_lshrrev_b32 v6, 2, v3")
    a("v_add_u32 v8, v8, v6")
    a("v_lshlrev_b32 v8, 6, v8")
    a("v_and_b32 v6, 3, v1")
    a("v_lshlrev_b32 v6, 3, v6")
    a("v_add_u32 v8, v8, v6")
    a("v_lshlrev_b32 v6, 13, v2")
    a("v_add_u32 v8, v8, v6")
    a("s_waitcnt lgkmcnt(0)")
    for t in range(2):
        for s in range(4):
            for hf in range(2):
                r = V_W2 + (t * 4 + s) * 4 + 2 * hf
                a(f"ds_read_b64_tr_b16 v[{r}:{r+1}], v8 offset:{(32*s+16*hf)*64 + t*32}")
    a("s_waitcnt lgkmcnt(0)")
    a("s_barrier")
    a("v_lshlrev_b32 v5, 11, v3")
    a("v_lshlrev_b32 v6, 8, v2")
    a("v_lshlrev_b32 v7, 4, v4")
    a("v_add3_u32 v5, v5, v6, v7")
    a("v_lshlrev_b32 v28, 4, v2")
    a("v_add_u32 v28, v28, v4")
    a("v_lshlrev_b32 v28, 3, v28")
    a("v_add_u32 v28, v28, v3")
    a("v_lshlrev_b32 v28, 4, v28")
    a("v_lshrrev_b32 v6, 4, v0")
    a("v_lshlrev_b32 v6, 13, v6")
    a("v_and_b32 v7, 15, v0")
    a("v_lshlrev_b32 v7, 4, v7")
    a("s_lshl_b32 s21, s16, 8")
    a("v_add3_u32 v6, v6, v7, s21")
    a("v_lshrrev_b32 v7, 4, v0")
    a("v_mul_u32_u24 v7, 272, v7")
    a("v_and_b32 v8, 15, v0")
    a("v_lshlrev_b32 v8, 4, v8")
    a("v_add_u32 v7, v7, v8")
    a("v_lshlrev_b32 v8, 4, v0")
    a("s_lshl_b32 s21, s16, 13")
    a("v_add_u32 v8, s21, v8")
    a("v_lshrrev_b32 v9, 2, v0")
    a("v_mul_u32_u24 v9, 72, v9")
    a("v_and_b32 v10, 3, v0")
    a("v_lshlrev_b32 v10, 4, v10")
    a("v_add_u32 v9, v9, v10")
    a(f"v_add_u32 v9, {L_VTX}, v9")
    a("v_mul_u32_u24 v10, 384, v2")
    a("v_add_u32 v10, v10, v1")
    a("v_lshlrev_b32 v10, 4, v10")
    a(f"v_add_u32 v10, {L_RED}, v10")
    a("v_lshrrev_b32 v11, 7, v0")
    a("v_lshlrev_b32 v11, 1, v11")
    a("v_bfe_u32 v12, v0, 3, 1")
    a("v_add_u32 v11, v11, v12")
    a("v_lshlrev_b32 v11, 6, v11")
    a("v_bfe_u32 v12, v0, 1, 2")
    a("v_lshlrev_b32 v12, 4, v12")
    a("v_add_u32 v11, v11, v12")
    a("v_bfe_u32 v12, v0, 4, 3")
    a("v_add_u32 v11, v11, v12")
    a("v_lshlrev_b32 v11, 4, v11")
    a("v_and_b32 v12, 1, v0")
    a("v_lshlrev_b32 v12, 3, v12")
    a("v_add_u32 v11, v11, v12")
    a(f"v_add_u32 v11, {L_RED}, v11")
    a("v_add_u32 v12, 4, v11")
    a("v_subrev_u32 v14, 0x100, v0")
    a("v_bfe_u32 v15, v14, 6, 1")
    a("v_add_u32 v15, 4, v15")
    a("v_lshlrev_b32 v15, 6, v15")
    a("v_bfe_u32 v16, v14, 4, 2")
    a("v_lshlrev_b32 v16, 4, v16")
    a("v_add_u32 v15, v15, v16")
    a("v_and_b32 v16, 3, v14")
    a("v_lshlrev_b32 v16, 1, v16")
    a("v_add_u32 v15, v15, v16")
    a("v_lshlrev_b32 v15, 4, v15")
    a("v_bfe_u32 v16, v14, 2, 2")
    a("v_lshlrev_b32 v16, 2, v16")
    a("v_add_u32 v15, v15, v16")
    a(f"v_add_u32 v15, {L_RED}, v15")
    a("v_add_u32 v16, 16, v15")
    a("v_cmp_le_u32 vcc, 0x100, v0")
    a("s_nop 1")
    a("v_cndmask_b32 v11, v11, v15, vcc")
    a("v_cndmask_b32 v12, v12, v16, vcc")
    a("v_lshlrev_b32 v13, 2, v0")
    a("s_mul_i32 s21, s17, 1536")
    a("v_add_u32 v13, s21, v13")
    a("v_lshlrev_b32 v14, 4, v0")
    a("v_mul_u32_u24 v18, 683, v0")
    a("v_lshrrev_b32 v18, 16, v18")
    a("v_mul_u32_u24 v19, 96, v18")
    a("v_sub_u32 v19, v0, v19")
    a("v_lshrrev_b32 v20, 5, v19")
    a("v_and_b32 v21, 31, v19")
    a("v_lshlrev_b32 v22, 3, v20")
    a("v_lshrrev_b32 v23, 2, v21")
    a("v_add_u32 v22, v22, v23")
    a("v_mul_u32_u24 v22, 272, v22")
    a("v_lshlrev_b32 v23, 6, v18")
    a("v_add_u32 v22, v22, v23")
    a("v_and_b32 v23, 3, v21")
    a("v_lshlrev_b32 v23, 4, v23")
    a("v_add_u32 v22, v22, v23")
    a(f"v_add_u32 v22, {L_Q}, v22")
    a("v_lshlrev_b32 v23, 5, v18")
    a("v_add_u32 v23, v23, v21")
    a("v_lshlrev_b32 v23, 4, v23")
    a(f"v_add_u32 v23, {L_VTM}, v23")
    a("v_cmp_eq_u32 vcc, 2, v20")
    a("s_nop 1")
    a("v_cndmask_b32 v15, v22, v23, vcc")
    a("v_mul_u32_u24 v17, 272, v3")
    a("v_lshlrev_b32 v18, 4, v4")
    a("v_add_u32 v17, v17, v18")
    a("v_lshlrev_b32 v18, 4, v2")
    a("v_add_u32 v18, v18, v3")
    a("v_lshlrev_b32 v19, 4, v18")
    a("v_mul_u32_u24 v18, 72, v18")
    a("v_lshlrev_b32 v20, 3, v4")
    a("v_add_u32 v18, v18, v20")
    a(f"v_add_u32 v18, {L_VTX}, v18")
    a("v_and_b32 v20, 1, v4")
    a("v_lshlrev_b32 v20, 3, v20")
    a("v_add_u32 v19, v19, v20")
    a(f"v_add_u32 v19, {L_VTM}, v19")
    a("v_lshlrev_b32 v16, 3, v0")
    a(f"v_add_u32 v16, {L_OX}, v16")
    a("v_lshlrev_b32 v20, 3, v1")
    a(f"v_add_u32 v20, {L_OX}, v20")
    a("v_lshlrev_b32 v22, 3, v2")
    a("v_add_u32 v22, v22, v4")
    a("v_lshlrev_b32 v22, 3, v22")
    a("v_add_u32 v22, v22, v3")
    a("v_lshlrev_b32 v22, 4, v22")
    a("s_lshl_b32 s21, s17, 5")
    a("s_add_u32 s21, s21, s16")
    a("s_lshl_b32 s21, s21, 13")
    a("v_add_u32 v22, s21, v22")
    a("v_lshlrev_b32 v23, 13, v4")
    a("v_lshlrev_b32 v24, 4, v3")
    a("s_lshl_b32 s21, s17, 18")
    a("s_lshl_b32 s22, s16, 8")
    a("s_add_u32 s21, s21, s22")
    a("v_add3_u32 v23, v23, v24, s21")
    a("v_and_b32 v24, 7, v1")
    a("v_lshlrev_b32 v24, 4, v24")
    a("v_bfe_u32 v25, v1, 3, 1")
    a("v_lshlrev_b32 v25, 3, v25")
    a("s_lshl_b32 s21, s17, 12")
    a("s_lshl_b32 s22, s16, 7")
    a("s_add_u32 s21, s21, s22")
    a("v_add3_u32 v24, v24, v25, s21")
    a("v_mov_b32 v26, -1")
    a("v_mov_b32 v25, 0x7fc07fc0")
    a("s_mov_b32 s18, 0")
    srd(a, 12, 6, 7, 16384)
    a("v_cmp_gt_u32 vcc, 8, v3")
    a("s_and_saveexec_b64 s[32:33], vcc")
    for ks in range(4):
        a(f"buffer_load_dwordx4 v[{32+4*ks}:{35+4*ks}], v5, s[12:15], 0 offen offset:{ks*64}")
    a("s_mov_b64 exec, s[32:33]")
    a("rec_step:")
    stamp(a, 0)
    a("s_lshl_b32 s21, s18, 18")
    a(f"s_add_u32 s21, s21, {WS_K}")
    a("buffer_load_dwordx4 v[112:115], v6, s[8:11], s21 offen")
    a("s_lshl_b32 s21, s18, 18")
    a(f"s_add_u32 s21, s21, {WS_VT}")
    a("buffer_load_dwordx4 v[120:123], v8, s[8:11], s21 offen")
    a("s_cmp_eq_u32 s18, 0")
    a("s_cbranch_scc1 rec_p1s")
    a("s_lshl_b32 s21, s18, 14")
    a(f"s_add_u32 s21, s21, {WS_MEM}")
    a("s_mov_b32 s19, 0")
    a("v_cmp_gt_u32 vcc, 8, v3")
    a("s_and_saveexec_b64 s[32:33], vcc")
    a("rec_p1:")
    for ks in range(4):
        a(f"buffer_load_dwordx4 v[{32+4*ks}:{35+4*ks}], v28, s[8:11], s21 offen offset:{ks*512} sc1")
    a("s_waitcnt vmcnt(0)")
    any_sentinel(a, range(32, 48), 27)
    poll_tail(a, "rec_p1", "rec_p1d")
    a("s_mov_b64 exec, s[32:33]")
    a("rec_p1s:")
    a("s_waitcnt vmcnt(0)")
    stamp(a, 1)
    for ks in range(4):
        for tl in range(6):
            w = V_W1 + (tl * 4 + ks) * 4
            c = "0" if ks == 0 else f"v[{64+4*tl}:{67+4*tl}]"
            a(f"v_mfma_f32_16x16x32_bf16 v[{64+4*tl}:{67+4*tl}], v[{w}:{w+3}], v[{32+4*ks}:{35+4*ks}], {c}")
    a("ds_write_b128 v7, v[112:115]")
    a("ds_write_b128 v9, v[120:123]")
    a("s_nop 7")
    for tl in range(6):
        a(f"ds_write_b128 v10, v[{64+4*tl}:{67+4*tl}] offset:{tl*1024}")
    a("s_waitcnt lgkmcnt(0)")
    a("s_barrier")
    stamp(a, 2)
    a("v_cmp_gt_u32 vcc, 0x180, v0")
    a("s_and_saveexec_b64 s[32:33], vcc")
    a("s_cbranch_execz rec_skip_pub")
    for wv in range(8):
        a(f"ds_read_b32 v{32+2*wv}, v11 offset:{wv*6144}")
        a(f"ds_read_b32 v{33+2*wv}, v12 offset:{wv*6144}")
    a("s_mul_i32 s21, s18, 196608")
    a("s_mul_i32 s22, s16, 6144")
    a("s_add_u32 s21, s21, s22")
    a(f"s_add_u32 s21, s21, {WS_QKVM}")
    a("s_waitcnt lgkmcnt(0)")
    for st in (2, 4, 8):
        for b in range(0, 16, 2 * st):
            a(f"v_add_f32 v{32+b}, v{32+b}, v{32+b+st}")
            a(f"v_add_f32 v{33+b}, v{33+b}, v{33+b+st}")
    a("v_cvt_pk_bf16_f32 v32, v32, v33")
    canon(a, 32)
    a("buffer_store_dword v32, v13, s[8:11], s21 offen sc1")
    stamp(a, 3)
    a("s_mov_b32 s19, 0")
    a("rec_p2:")
    a("buffer_load_dwordx4 v[32:35], v14, s[8:11], s21 offen sc1")
    a("s_waitcnt vmcnt(0)")
    any_sentinel(a, range(32, 36), 27)
    poll_tail(a, "rec_p2", "rec_p2d")
    a("ds_write_b128 v15, v[32:35]")
    a("rec_skip_pub:")
    a("s_mov_b64 exec, s[32:33]")
    a("s_waitcnt lgkmcnt(0)")
    a("s_barrier")
    stamp(a, 4)
    for ks in range(4):
        a(f"ds_read_b128 v[{32+4*ks}:{35+4*ks}], v17 offset:{L_Q + ks*64}")
        a(f"ds_read_b128 v[{80+4*ks}:{83+4*ks}], v17 offset:{L_KM + ks*64}")
        a(f"ds_read_b128 v[{48+4*ks}:{51+4*ks}], v17 offset:{L_KX + ks*64}")
        a(f"ds_read_b128 v[{64+4*ks}:{67+4*ks}], v17 offset:{L_KX + 16*272 + ks*64}")
    a(f"ds_read_b64 v[112:113], v18")
    a(f"ds_read_b64 v[114:115], v18 offset:32")
    a(f"ds_read_b64 v[116:117], v19")
    a(f"s_mov_b32 s21, {SCALE_BITS}")
    a(f"s_mov_b32 s22, {LOG2E}")
    for ks in range(4):
        a(f"s_waitcnt lgkmcnt({15-4*ks})")
        for t in range(3):
            c = "0" if ks == 0 else f"v[{96+4*t}:{99+4*t}]"
            a(f"v_mfma_f32_16x16x32_bf16 v[{96+4*t}:{99+4*t}], v[{48+16*t+4*ks}:{51+16*t+4*ks}], v[{32+4*ks}:{35+4*ks}], {c}")
    a("v_cmp_gt_u32 vcc, 2, v4")
    a("v_mov_b32 v27, 0xff800000")
    a("s_nop 7")
    for i in range(6):
        a(f"v_cvt_pk_bf16_f32 v{80+i}, v{96+2*i}, v{97+2*i}")
    for i in range(6):
        a(f"v_lshlrev_b32 v{96+2*i}, 16, v{80+i}")
        a(f"v_and_b32 v{97+2*i}, 0xffff0000, v{80+i}")
    for i in range(12):
        a(f"v_mul_f32 v{96+i}, s21, v{96+i}")
    for i in range(6):
        a(f"v_cvt_pk_bf16_f32 v{80+i}, v{96+2*i}, v{97+2*i}")
    for i in range(6):
        a(f"v_lshlrev_b32 v{96+2*i}, 16, v{80+i}")
        a(f"v_and_b32 v{97+2*i}, 0xffff0000, v{80+i}")
    for i in range(4):
        a(f"v_cndmask_b32 v{104+i}, v27, v{104+i}, vcc")
    a("v_max3_f32 v27, v96, v97, v98")
    a("v_max3_f32 v29, v99, v100, v101")
    a("v_max3_f32 v27, v27, v102, v103")
    a("v_max3_f32 v29, v29, v104, v105")
    a("v_max3_f32 v27, v27, v106, v107")
    a("v_max_f32 v27, v27, v29")
    xlane_reduce(a, "v_max_f32", 27, 29)
    a("v_mul_f32 v27, s22, v27")
    for i in range(12):
        a(f"v_fma_f32 v{96+i}, v{96+i}, s22, -v27")
    for i in range(12):
        a(f"v_exp_f32 v{96+i}, v{96+i}")
    a("s_nop 0")
    a("v_add_f32 v27, v96, v97")
    a("v_add_f32 v29, v98, v99")
    for i in range(4, 12, 2):
        a(f"v_add_f32 v27, v27, v{96+i}")
        a(f"v_add_f32 v29, v29, v{97+i}")
    a("v_add_f32 v27, v27, v29")
    xlane_reduce(a, "v_add_f32", 27, 29)
    a("v_rcp_f32 v27, v27")
    a("s_nop 0")
    for i in range(12):
        a(f"v_mul_f32 v{96+i}, v{96+i}, v27")
    for i in range(6):
        a(f"v_cvt_pk_bf16_f32 v{106+i}, v{96+2*i}, v{97+2*i}") if False else None
    for i in range(6):
        a(f"v_cvt_pk_bf16_f32 v{120+i}, v{96+2*i}, v{97+2*i}")
    a("s_waitcnt lgkmcnt(0)")
    a("s_nop 0")
    a("v_mfma_f32_16x16x32_bf16 v[96:99], v[112:115], v[120:123], 0")
    a("v_mfma_f32_16x16x16_bf16 v[104:107], v[116:117], v[124:125], 0")
    a("s_nop 7")
    a("s_nop 1")
    for i in range(4):
        a(f"v_add_f32 v{96+i}, v{96+i}, v{104+i}")
    a("v_cvt_pk_bf16_f32 v100, v96, v97")
    a("v_cvt_pk_bf16_f32 v101, v98, v99")
    a("ds_write_b64 v16, v[100:101]")
    if STAMP:
        a("s_cmp_lg_u32 s18, 0")
        a("s_cbranch_scc1 rec_nodbg")
        a("v_lshlrev_b32 v102, 3, v0")
        a("s_lshl_b32 s23, s2, 12")
        a(f"s_add_u32 s23, s23, {WS_DBG + 4*MB}")
        a("buffer_store_dwordx2 v[100:101], v102, s[8:11], s23 offen")
        a("rec_nodbg:")
    a("s_waitcnt lgkmcnt(0)")
    a("s_barrier")
    stamp(a, 5)
    a("s_cmp_eq_u32 s18, 63")
    a("s_cbranch_scc1 rec_done")
    for et in range(8):
        a(f"ds_read_b64 v[{40+2*et}:{41+2*et}], v20 offset:{et*512}")
    a("s_and_b32 s21, s18, 1")
    a("s_lshl_b32 s21, s21, 20")
    a(f"s_add_u32 s21, s21, {WS_PART}")
    for s in range(4):
        a(f"s_waitcnt lgkmcnt({6-2*s})")
        for t in range(2):
            w = V_W2 + (t * 4 + s) * 4
            c = "0" if s == 0 else f"v[{56+4*t}:{59+4*t}]"
            a(f"v_mfma_f32_16x16x32_bf16 v[{56+4*t}:{59+4*t}], v[{w}:{w+3}], v[{40+4*s}:{43+4*s}], {c}")
    a("s_nop 7")
    a("s_nop 1")
    for i in range(8):
        a(f"v_cmp_eq_u32 vcc, -1, v{56+i}")
        a("s_nop 1")
        a(f"v_cndmask_b32 v{56+i}, v{56+i}, v25, vcc")
    a("v_cmp_gt_u32 vcc, 8, v3")
    a("s_and_saveexec_b64 s[32:33], vcc")
    a("buffer_store_dwordx4 v[56:59], v22, s[8:11], s21 offen sc1")
    a("buffer_store_dwordx4 v[60:63], v22, s[8:11], s21 offen offset:512 sc1")
    a("s_mov_b64 exec, s[32:33]")
    stamp(a, 6)
    a("v_readfirstlane_b32 s22, v2")
    a("s_cmp_lg_u32 s22, 0")
    a("s_cbranch_scc1 rec_next")
    a("s_mov_b32 s19, 0")
    a("rec_p3:")
    a("s_mov_b32 s22, s21")
    for i in range(8):
        a(f"buffer_load_dwordx4 v[{64+4*i}:{67+4*i}], v23, s[8:11], s22 offen sc1")
        if i < 7:
            a("s_add_u32 s22, s22, 32768")
    a("s_waitcnt vmcnt(0)")
    any_sentinel(a, range(64, 96), 27)
    poll_tail(a, "rec_p3", "rec_p3d")
    stamp(a, 7)
    for st in (4, 8, 16):
        for b in range(0, 32, 2 * st):
            for c in range(4):
                a(f"v_add_f32 v{64+b+c}, v{64+b+c}, v{64+b+st+c}")
    for c in range(4):
        xlane_reduce(a, "v_add_f32", 64 + c, 68 + c)
    a("v_cvt_pk_bf16_f32 v40, v64, v65")
    a("v_cvt_pk_bf16_f32 v41, v66, v67")
    canon(a, 40)
    canon(a, 41)
    a("s_add_u32 s22, s18, 1")
    a("s_lshl_b32 s22, s22, 14")
    a(f"s_add_u32 s22, s22, {WS_MEM}")
    a("v_cmp_gt_u32 vcc, 16, v1")
    a("s_and_saveexec_b64 s[32:33], vcc")
    a("buffer_store_dwordx2 v[40:41], v24, s[8:11], s22 offen sc1")
    a("s_mov_b64 exec, s[32:33]")
    stamp(a, 8)
    a("v_mov_b32 v64, -1")
    a("v_mov_b32 v65, -1")
    a("v_mov_b32 v66, -1")
    a("v_mov_b32 v67, -1")
    a("s_mov_b32 s22, s21")
    for i in range(8):
        a(f"buffer_store_dwordx4 v[64:67], v23, s[8:11], s22 offen sc1")
        if i < 7:
            a("s_add_u32 s22, s22, 32768")
    if STAMP:
        a("s_waitcnt lgkmcnt(0)")
        a("s_lshl_b32 s22, s18, 7")
        a("s_lshl_b32 s23, s2, 13")
        a("s_add_u32 s22, s22, s23")
        a(f"s_add_u32 s22, s22, {WS_DBG}")
        for i in range(9):
            a(f"v_mov_b32 v40, s{50+2*i}")
            a(f"v_mov_b32 v41, 0")
            a(f"buffer_store_dword v40, v41, s[8:11], s22 offen offset:{4*i}")
    a("rec_next:")
    a("s_add_u32 s18, s18, 1")
    a("s_branch rec_step")
    a("rec_worker:")
    import gemm
    gemm.gen_worker(a)
    a("rec_done:")
    a("s_endpgm")
    return kernel_desc(name, 256, 80)
```

```python
import sys
from gen_common import *
from gemm import *
from rec import *
from attn import *
from gemm2 import gen_gemm2, L2_STAGE

def gen_ln(a):
    name = "ln_kernel"
    kernel_header(a, name)
    a("s_cmp_ge_u32 s2, 512")
    a("s_cbranch_scc1 ln_done")
    a(f"s_load_dwordx2 s[4:5], s[0:1], {KA['x']}")
    a(f"s_load_dwordx2 s[6:7], s[0:1], {KA['ws']}")
    a("s_waitcnt lgkmcnt(0)")
    srd(a, 8, 4, 5, 4 * MB)
    srd(a, 12, 6, 7, WS_SIZE)
    a("v_lshrrev_b32 v1, 6, v0")
    a("v_and_b32 v2, 63, v0")
    a("s_lshl_b32 s3, s2, 2")
    a("v_add_u32 v1, s3, v1")
    a("v_lshlrev_b32 v1, 11, v1")
    a("v_lshlrev_b32 v3, 4, v2")
    a("v_add_u32 v1, v1, v3")
    a("buffer_load_dwordx4 v[4:7], v1, s[8:11], 0 offen")
    a("buffer_load_dwordx4 v[8:11], v1, s[8:11], 0 offen offset:1024")
    a("v_mov_b32 v40, -1")
    a("v_mov_b32 v41, -1")
    a("v_mov_b32 v42, -1")
    a("v_mov_b32 v43, -1")
    a("s_lshl_b32 s3, s2, 15")
    a(f"s_add_u32 s3, s3, {WS_SYNC}")
    a("v_lshlrev_b32 v44, 4, v0")
    for i in range(8):
        a(f"buffer_store_dwordx4 v[40:43], v44, s[12:15], s3 offen")
        a("s_add_u32 s3, s3, 4096")
    a("s_waitcnt vmcnt(8)")
    for i in range(8):
        a(f"v_lshlrev_b32 v{12+2*i}, 16, v{4+i}")
        a(f"v_and_b32 v{13+2*i}, 0xffff0000, v{4+i}")
    for rep, dst in ((0, WS_XN), (1, WS_Y)):
        a("v_add_f32 v28, v12, v13")
        for i in range(2, 16):
            a(f"v_add_f32 v28, v28, v{12+i}")
        wave_sum(a, 28, 29, 16)
        a("v_mov_b32 v28, 0x3a800000")
        a("v_mul_f32 v30, s16, v28")
        a("v_sub_f32 v29, v12, v30")
        a("v_mul_f32 v28, v29, v29")
        for i in range(1, 16):
            a(f"v_sub_f32 v29, v{12+i}, v30")
            a("v_fmac_f32 v28, v29, v29")
        wave_sum(a, 28, 29, 17)
        a("v_mov_b32 v28, 0x3a800000")
        a("v_mul_f32 v31, s17, v28")
        bf16_round(a, 30, 30)
        bf16_round(a, 31, 31)
        a("v_add_f32 v31, 0x3727c5ac, v31")
        bf16_round(a, 31, 31)
        a("v_sqrt_f32 v31, v31")
        a("s_nop 0")
        bf16_round(a, 31, 31)
        a("v_rcp_f32 v31, v31")
        a("s_nop 0")
        for i in range(16):
            a(f"v_sub_f32 v29, v{12+i}, v30")
            bf16_round(a, 29, 29)
            a(f"v_mul_f32 v{12+i}, v29, v31")
        for i in range(8):
            a(f"v_cvt_pk_bf16_f32 v{4+i}, v{12+2*i}, v{13+2*i}")
        a(f"s_mov_b32 s3, {dst}")
        a("buffer_store_dwordx4 v[4:7], v1, s[12:15], s3 offen")
        a("buffer_store_dwordx4 v[8:11], v1, s[12:15], s3 offen offset:1024")
        if rep == 0:
            for i in range(8):
                a(f"v_lshlrev_b32 v{12+2*i}, 16, v{4+i}")
                a(f"v_and_b32 v{13+2*i}, 0xffff0000, v{4+i}")
    a("ln_done:")
    a("s_endpgm")
    return kernel_desc(name, 48, 24)


def main():
    import rec, os
    rec.STAMP = bool(os.environ.get('STAMP'))
    rec.SLEEP = int(os.environ.get('SLEEP', '0'))
    a = Asm()
    descs = []
    launches = []
    body = Asm()
    descs.append(gen_ln(body))
    launches.append("; @launch kernel=ln_kernel grid=(512,1,1) block=(256,1,1) lds=0")
    descs.append(gen_gemm1(body))
    launches.append(f"; @launch kernel=gemm1_kernel grid=(1024,1,1) block=(256,1,1) lds={2*LDS_STAGE}")
    descs.append(gen_rec(body))
    launches.append(f"; @launch kernel=rec_kernel grid=(256,1,1) block=(512,1,1) lds={REC_LDS}")
    descs.append(gen_attn(body))
    launches.append(f"; @launch kernel=attn_kernel grid=(512,1,1) block=(256,1,1) lds=0")
    descs.append(gen_gemm2(body))
    launches.append(f"; @launch kernel=gemm2_kernel grid=(256,1,1) block=(256,1,1) lds={2*L2_STAGE}")
    out = []
    out += launches
    out.append('.amdgcn_target "amdgcn-amd-amdhsa--gfx950"')
    out.append(".text")
    out.append(body.text())
    out.append('.section .rodata,"a"')
    for d in descs:
        out.append(".p2align 6")
        out.append(d)
    open(sys.argv[1], "w").write("\n".join(out))


if __name__ == "__main__":
    main()
```

```python
from gen_common import *
from rec import SCALE_BITS, LOG2E, any_sentinel


def attn_body(a, pfx):
    a("v_and_b32 v1, 63, v0")
    a("v_lshrrev_b32 v2, 6, v0")
    a("v_and_b32 v3, 15, v1")
    a("v_lshrrev_b32 v4, 4, v1")
    a("s_nop 1")
    a("v_readfirstlane_b32 s18, v2")
    a("s_nop 3")
    a("s_add_u32 s17, s17, s18")
    a("v_lshlrev_b32 v5, 13, v3")
    a("v_lshlrev_b32 v6, 4, v4")
    a("v_add_u32 v5, v5, v6")
    a("s_lshl_b32 s20, s16, 18")
    a("s_lshl_b32 s21, s17, 8")
    a("s_add_u32 s20, s20, s21")
    a(f"s_add_u32 s21, s20, {WS_Q}")
    a("s_add_u32 s22, s21, 0x20000")
    for ks in range(4):
        a(f"buffer_load_dwordx4 v[{32+4*ks}:{35+4*ks}], v5, s[8:11], s21 offen offset:{ks*64} sc1")
    for ks in range(4):
        a(f"buffer_load_dwordx4 v[{48+4*ks}:{51+4*ks}], v5, s[8:11], s22 offen offset:{ks*64} sc1")
    a(f"s_add_u32 s21, s20, {WS_K}")
    a("s_add_u32 s22, s21, 0x20000")
    for ks in range(4):
        a(f"buffer_load_dwordx4 v[{64+4*ks}:{67+4*ks}], v5, s[8:11], s21 offen offset:{ks*64} sc1")
    for ks in range(4):
        a(f"buffer_load_dwordx4 v[{80+4*ks}:{83+4*ks}], v5, s[8:11], s22 offen offset:{ks*64} sc1")
    a("s_mul_i32 s23, s16, 196608")
    a("s_mul_i32 s24, s17, 6144")
    a("s_add_u32 s23, s23, s24")
    a(f"s_add_u32 s23, s23, {WS_QKVM}")
    a("v_and_b32 v7, 7, v3")
    a("v_lshlrev_b32 v7, 6, v7")
    a("v_add_u32 v7, v7, v6")
    a("s_add_u32 s26, s23, 0xc00")
    a("v_lshlrev_b32 v8, 6, v3")
    a("v_lshlrev_b32 v9, 3, v4")
    a("v_add_u32 v8, v8, v9")
    a("s_lshl_b32 s24, s16, 18")
    a("s_lshl_b32 s25, s17, 13")
    a("s_add_u32 s24, s24, s25")
    a(f"s_add_u32 s24, s24, {WS_VT}")
    a("s_add_u32 s25, s24, 0x1000")
    for et in range(8):
        so = 24 if et < 4 else 25
        a(f"buffer_load_dwordx2 v[{112+4*et}:{113+4*et}], v8, s[8:11], s{so} offen offset:{(et%4)*1024} sc1")
        a(f"buffer_load_dwordx2 v[{114+4*et}:{115+4*et}], v8, s[8:11], s{so} offen offset:{(et%4)*1024+32} sc1")
    a("v_lshlrev_b32 v9, 4, v3")
    a("v_and_b32 v10, 1, v4")
    a("v_lshlrev_b32 v10, 3, v10")
    a("v_add_u32 v9, v9, v10")
    top = a.label(pfx + "poll")
    done = a.label(pfx + "pd")
    a("s_mov_b32 s19, 0")
    top0 = a.label(pfx + "pp")
    a("v_and_b32 v27, 3, v1")
    a("v_mul_u32_u24 v27, 1536, v27")
    a("v_add_u32 v27, 1532, v27")
    a(f"{top0}:")
    a("buffer_load_dword v28, v27, s[8:11], s23 offen sc1")
    a("s_waitcnt vmcnt(0)")
    a("v_cmp_eq_u32 vcc, -1, v28")
    a(f"s_cbranch_vccz {top}")
    a("s_sleep 48")
    a("s_add_u32 s19, s19, 1")
    a("s_cmp_lt_u32 s19, 0x80000")
    a(f"s_cbranch_scc1 {top0}")
    a(f"{top}:")
    for ks in range(4):
        so = 23 if ks < 2 else 26
        a(f"buffer_load_dwordx4 v[{96+4*ks}:{99+4*ks}], v7, s[8:11], s{so} offen offset:{512+(ks%2)*1536} sc1")
    for et in range(8):
        so = 23 if et < 4 else 26
        a(f"buffer_load_dwordx2 v[{144+4*et}:{145+4*et}], v9, s[8:11], s{so} offen offset:{1024+((et>>1)%2)*1536+(et&1)*256} sc1")
    a("s_waitcnt vmcnt(0)")
    regs = list(range(96, 112)) + [144 + 4 * et + k for et in range(8) for k in range(2)]
    any_sentinel(a, regs, 27)
    a(f"s_cbranch_vccz {done}")
    a("s_sleep 16")
    a("s_add_u32 s19, s19, 1")
    a("s_cmp_lt_u32 s19, 0x100000")
    a(f"s_cbranch_scc1 {top}")
    a(f"{done}:")
    for i in range(24):
        a(f"v_mov_b32 v{176+i}, 0")
    a("v_xor_b32 v20, 16, v1")
    a("v_lshlrev_b32 v20, 2, v20")
    a("v_xor_b32 v21, 32, v1")
    a("v_lshlrev_b32 v21, 2, v21")
    for mt in range(2):
        for ks in range(4):
            for t in range(3):
                acc = 176 + 12 * mt + 4 * t
                a(f"v_mfma_f32_16x16x32_bf16 v[{acc}:{acc+3}], v[{64+16*t+4*ks}:{67+16*t+4*ks}], v[{32+16*mt+4*ks}:{35+16*mt+4*ks}], v[{acc}:{acc+3}]")
    a("s_waitcnt vmcnt(0)")
    a("v_cmp_gt_u32 vcc, 2, v4")
    a("s_nop 1")
    for et in range(8):
        a(f"v_cndmask_b32 v{144+4*et}, 0, v{144+4*et}, vcc")
        a(f"v_cndmask_b32 v{145+4*et}, 0, v{145+4*et}, vcc")
        a(f"v_mov_b32 v{146+4*et}, 0")
        a(f"v_mov_b32 v{147+4*et}, 0")
    a(f"s_mov_b32 s27, {SCALE_BITS}")
    a(f"s_mov_b32 s28, {LOG2E}")
    a("v_mov_b32 v22, 0xff800000")
    a("v_lshlrev_b32 v23, 13, v3")
    a("v_lshlrev_b32 v24, 3, v4")
    a("v_add_u32 v23, v23, v24")
    a(f"s_add_u32 s29, s20, {WS_O}")
    for mt in range(2):
        b = 176 + 12 * mt
        for i in range(12):
            bf16_round(a, b + i, b + i)
            a(f"v_mul_f32 v{b+i}, s27, v{b+i}")
            bf16_round(a, b + i, b + i)
        a("v_lshlrev_b32 v24, 2, v4")
        for t in range(2):
            for i in range(4):
                c = 16 * t + i - 16 * mt
                a(f"v_add_u32 v25, {c}, v24") if c >= 0 else a(f"v_subrev_u32 v25, {-c}, v24")
                a("v_cmp_le_i32 vcc, v25, v3")
                a("s_nop 1")
                a(f"v_cndmask_b32 v{b+4*t+i}, v22, v{b+4*t+i}, vcc")
        a("v_cmp_gt_u32 vcc, 2, v4")
        a("s_nop 1")
        for i in range(4):
            a(f"v_cndmask_b32 v{b+8+i}, v22, v{b+8+i}, vcc")
        a(f"v_max3_f32 v27, v{b}, v{b+1}, v{b+2}")
        a(f"v_max3_f32 v27, v27, v{b+3}, v{b+4}")
        a(f"v_max3_f32 v27, v27, v{b+5}, v{b+6}")
        a(f"v_max3_f32 v27, v27, v{b+7}, v{b+8}")
        a(f"v_max3_f32 v27, v27, v{b+9}, v{b+10}")
        a(f"v_max_f32 v27, v27, v{b+11}")
        a("ds_bpermute_b32 v28, v20, v27")
        a("s_waitcnt lgkmcnt(0)")
        a("v_max_f32 v27, v27, v28")
        a("ds_bpermute_b32 v28, v21, v27")
        a("s_waitcnt lgkmcnt(0)")
        a("v_max_f32 v27, v27, v28")
        a("v_mov_b32 v28, 0")
        for i in range(12):
            a(f"v_sub_f32 v{b+i}, v{b+i}, v27")
            a(f"v_mul_f32 v{b+i}, s28, v{b+i}")
            a(f"v_exp_f32 v{b+i}, v{b+i}")
            a("s_nop 0")
            a(f"v_add_f32 v28, v28, v{b+i}")
        a("ds_bpermute_b32 v29, v20, v28")
        a("s_waitcnt lgkmcnt(0)")
        a("v_add_f32 v28, v28, v29")
        a("ds_bpermute_b32 v29, v21, v28")
        a("s_waitcnt lgkmcnt(0)")
        a("v_add_f32 v28, v28, v29")
        a("v_rcp_f32 v28, v28")
        a("s_nop 0")
        for i in range(12):
            a(f"v_mul_f32 v{b+i}, v{b+i}, v28")
        for i in range(6):
            a(f"v_cvt_pk_bf16_f32 v{200+i}, v{b+2*i}, v{b+1+2*i}")
        a("v_mov_b32 v206, 0")
        a("v_mov_b32 v207, 0")
        for i in range(32):
            a(f"v_mov_b32 v{32+i}, 0")
        a("s_nop 1")
        for et in range(8):
            a(f"v_mfma_f32_16x16x32_bf16 v[{32+4*et}:{35+4*et}], v[{112+4*et}:{115+4*et}], v[200:203], v[{32+4*et}:{35+4*et}]")
        for et in range(8):
            a(f"v_mfma_f32_16x16x32_bf16 v[{32+4*et}:{35+4*et}], v[{144+4*et}:{147+4*et}], v[204:207], v[{32+4*et}:{35+4*et}]")
        a("s_nop 7")
        a("s_nop 1")
        for et in range(8):
            a(f"v_cvt_pk_bf16_f32 v{208+2*et}, v{32+4*et}, v{33+4*et}")
            a(f"v_cvt_pk_bf16_f32 v{209+2*et}, v{34+4*et}, v{35+4*et}")
            a(f"buffer_store_dwordx2 v[{208+2*et}:{209+2*et}], v23, s[8:11], s29 offen offset:{et*32} sc1")
        a("s_add_u32 s29, s29, 0x20000")
        a("s_nop 1")
```

```python
from gen_common import *

LDA_S = 144
LDB_S = 320
LDS_A = 128 * LDA_S
LDS_B = 64 * LDB_S
LDS_STAGE = LDS_A + LDS_B

V_ST = 16
V_F = 48
V_ACC = 80
V_ST2 = 176


def gemm_setup_addrs(a):
    a("v_and_b32 v6, 63, v0")
    a("v_lshrrev_b32 v7, 6, v0")
    a("v_lshrrev_b32 v1, 3, v0")
    a(f"v_mul_u32_u24 v2, {LDA_S}, v1")
    a("v_and_b32 v1, 7, v0")
    a("v_lshlrev_b32 v1, 4, v1")
    a("v_add_u32 v2, v2, v1")
    a("v_lshrrev_b32 v1, 4, v0")
    a(f"v_mul_u32_u24 v3, {LDB_S}, v1")
    a("v_and_b32 v1, 15, v0")
    a("v_lshlrev_b32 v1, 4, v1")
    a(f"v_add3_u32 v3, v3, v1, s40")
    a("v_lshrrev_b32 v1, 1, v7")
    a("v_lshlrev_b32 v1, 6, v1")
    a("v_and_b32 v8, 31, v6")
    a("v_add_u32 v1, v1, v8")
    a(f"v_mul_u32_u24 v4, {LDA_S}, v1")
    a("v_lshrrev_b32 v1, 5, v6")
    a("v_lshlrev_b32 v1, 4, v1")
    a("v_add_u32 v4, v4, v1")
    a("v_lshrrev_b32 v1, 5, v6")
    a("v_lshlrev_b32 v1, 3, v1")
    a("v_and_b32 v8, 15, v6")
    a("v_lshrrev_b32 v8, 2, v8")
    a("v_add_u32 v1, v1, v8")
    a(f"v_mul_u32_u24 v5, {LDB_S}, v1")
    a("v_and_b32 v1, 1, v7")
    a("v_lshlrev_b32 v1, 7, v1")
    a("v_bfe_u32 v8, v6, 4, 1")
    a("v_lshlrev_b32 v8, 5, v8")
    a("v_add_u32 v1, v1, v8")
    a("v_and_b32 v8, 3, v6")
    a("v_lshlrev_b32 v8, 3, v8")
    a("v_add3_u32 v5, v5, v1, v8")
    a("v_add_u32 v5, s40, v5")
    if LDSBASE[0]:
        for r in (2, 3, 4, 5):
            a(f"v_add_u32 v{r}, s57, v{r}")


LDSBASE = [False]
AFLAG = [""]
def gemm_loads(a, sA, sB, V_ST=V_ST):
    for i in range(4):
        a(f"buffer_load_dwordx4 v[{V_ST+4*i}:{V_ST+4*i+3}], v10, s[8:11], s{sA+i} offen {AFLAG[0]}")
    for i in range(4):
        a(f"buffer_load_dwordx4 v[{V_ST+16+4*i}:{V_ST+16+4*i+3}], v11, s[12:15], s{sB+i} offen")


def gemm_lds_write(a, buf, V_ST=V_ST):
    for i in range(4):
        a(f"ds_write_b128 v2, v[{V_ST+4*i}:{V_ST+4*i+3}] offset:{buf*LDS_STAGE + i*32*LDA_S}")
    for i in range(4):
        a(f"ds_write_b128 v3, v[{V_ST+16+4*i}:{V_ST+16+4*i+3}] offset:{buf*LDS_STAGE + i*16*LDB_S}")


def gemm_read_frags(a, buf, ks, fs):
    f = V_F + 16 * fs
    for mi in range(2):
        a(f"ds_read_b128 v[{f+4*mi}:{f+4*mi+3}], v4 offset:{buf*LDS_STAGE + mi*32*LDA_S + ks*32}")
    for ni in range(2):
        for half in range(2):
            a(f"ds_read_b64_tr_b16 v[{f+8+4*ni+2*half}:{f+8+4*ni+2*half+1}], v5 offset:{buf*LDS_STAGE + (ks*16+4*half)*LDB_S + ni*64}")


def gemm_mfmas(a, fs, swapped):
    f = V_F + 16 * fs
    for mi in range(2):
        for ni in range(2):
            acc = V_ACC + 16 * (2 * mi + ni)
            A = f"v[{f+4*mi}:{f+4*mi+3}]"
            B = f"v[{f+8+4*ni}:{f+8+4*ni+3}]"
            if swapped:
                a(f"v_mfma_f32_32x32x16_bf16 v[{acc}:{acc+15}], {B}, {A}, v[{acc}:{acc+15}]")
            else:
                a(f"v_mfma_f32_32x32x16_bf16 v[{acc}:{acc+15}], {A}, {B}, v[{acc}:{acc+15}]")


def adv(a, sA, sB, incA, incB):
    for i in range(4):
        a(f"s_add_u32 s{sA+i}, s{sA+i}, {incA}")
        a(f"s_add_u32 s{sB+i}, s{sB+i}, s{incB}")


def gemm_stage(a, buf, swapped, sA, sB, incA, incB):
    st = [V_ST, V_ST2]
    gemm_loads(a, sA, sB, st[buf])
    adv(a, sA, sB, incA, incB)
    gemm_read_frags(a, buf, 0, 0)
    for ks in range(4):
        if ks < 3:
            gemm_read_frags(a, buf, ks + 1, (ks + 1) & 1)
            a("s_waitcnt lgkmcnt(6)")
        else:
            a("s_waitcnt lgkmcnt(0)")
        gemm_mfmas(a, ks & 1, swapped)
    a("s_waitcnt vmcnt(8)")
    gemm_lds_write(a, buf ^ 1, st[buf ^ 1])
    a("s_waitcnt lgkmcnt(0)")
    a("s_barrier")


def gemm_zero_acc(a):
    for i in range(64):
        a(f"v_mov_b32 v{V_ACC+i}, 0")


def gemm_mainloop(a, nstages, swapped, sA, sB, incA, incB, scnt):
    assert nstages % 2 == 0
    gemm_loads(a, sA, sB, V_ST)
    adv(a, sA, sB, incA, incB)
    gemm_loads(a, sA, sB, V_ST2)
    adv(a, sA, sB, incA, incB)
    a("s_waitcnt vmcnt(8)")
    gemm_lds_write(a, 0, V_ST)
    a("s_waitcnt lgkmcnt(0)")
    a("s_barrier")
    lp = a.label("gloop")
    a(f"s_mov_b32 s{scnt}, {nstages//2}")
    a(f"{lp}:")
    gemm_stage(a, 0, swapped, sA, sB, incA, incB)
    gemm_stage(a, 1, swapped, sA, sB, incA, incB)
    a(f"s_sub_u32 s{scnt}, s{scnt}, 1")
    a(f"s_cmp_lg_u32 s{scnt}, 0")
    a(f"s_cbranch_scc1 {lp}")
    a("s_waitcnt vmcnt(0)")


def gelu_tanh(a, v, t0, t1):
    a(f"v_mul_f32 v{t0}, v{v}, v{v}")
    a(f"v_mul_f32 v{t0}, v{t0}, v{v}")
    a(f"v_fma_f32 v{t0}, v{t0}, s44, v{v}")
    a(f"v_mul_f32 v{t0}, s45, v{t0}")
    a(f"v_exp_f32 v{t0}, v{t0}")
    a("s_nop 0")
    a(f"v_add_f32 v{t0}, 1.0, v{t0}")
    a(f"v_rcp_f32 v{t0}, v{t0}")
    a("s_nop 0")
    a(f"v_mul_f32 v{v}, v{v}, v{t0}")


def tile1(a, pfx, types, hflag="", kvflag="", ksplit=False):
    a("s_lshr_b32 s5, s4, 5")
    a(f"s_mov_b32 s40, {LDS_A}")
    a("s_cmp_eq_u32 s5, 0")
    a("s_cselect_b32 s6, s16, s18")
    a("s_cselect_b32 s7, s17, s19")
    a("s_cmp_eq_u32 s5, 2")
    a("s_cselect_b32 s6, s20, s6")
    a("s_cselect_b32 s7, s21, s7")
    a("s_cmp_eq_u32 s5, 3")
    a("s_cselect_b32 s6, s24, s6")
    a("s_cselect_b32 s7, s25, s7")
    a("s_mov_b32 s30, 8192")
    a("s_cselect_b32 s30, 7168, s30")
    a(f"s_mov_b32 s31, {8*MB}")
    a(f"s_cselect_b32 s31, {1024*3584*2}, s31")
    a(f"s_cselect_b32 s32, {WS_Y}, {WS_XN}")
    a("s_mov_b32 s12, s6")
    a("s_mov_b32 s13, s7")
    a("s_mov_b32 s14, s31")
    a("s_mov_b32 s15, 0x00020000")
    srd(a, 8, 28, 29, WS_SIZE)
    a("s_and_b32 s33, s4, 31")
    gemm_setup_addrs(a)
    a("v_lshrrev_b32 v1, 3, v0")
    a("s_lshl_b32 s34, s3, 7")
    a("v_add_u32 v1, s34, v1")
    a("v_lshlrev_b32 v10, 11, v1")
    a("v_and_b32 v1, 7, v0")
    a("v_lshlrev_b32 v1, 4, v1")
    a("v_add3_u32 v10, v10, v1, s32")
    a("v_lshrrev_b32 v1, 4, v0")
    a("v_mul_lo_u32 v11, v1, s30")
    a("v_and_b32 v1, 15, v0")
    a("v_lshlrev_b32 v1, 4, v1")
    a("s_lshl_b32 s34, s33, 8")
    a("v_add3_u32 v11, v11, v1, s34")
    for i in range(4):
        a(f"s_mov_b32 s{48+i}, {i*65536}")
        a(f"s_mul_i32 s{52+i}, s30, {16*i}")
    if ksplit:
        a("s_lshl_b32 s37, s59, 10")
        a("s_lshl_b32 s38, s30, 9")
        a("s_mul_i32 s38, s38, s59")
        for i in range(4):
            a(f"s_add_u32 s{48+i}, s{48+i}, s37")
            a(f"s_add_u32 s{52+i}, s{52+i}, s38")
    NST = 8 if ksplit else 16

    def combine(lbl):
        if not ksplit:
            return
        a("v_lshlrev_b32 v1, 4, v0")
        a("s_cmp_eq_u32 s59, 0")
        a(f"s_cbranch_scc1 {pfx}{lbl}c0")
        for i in range(16):
            a(f"ds_write_b128 v1, v[{V_ACC+4*i}:{V_ACC+4*i+3}] offset:{i*4096}")
        a(f"{pfx}{lbl}c0:")
        a("s_waitcnt lgkmcnt(0)")
        a("s_barrier")
        a("s_cmp_lg_u32 s59, 0")
        a(f"s_cbranch_scc1 {pfx}done")
        for half in range(2):
            for i in range(8):
                a(f"ds_read_b128 v[{144+4*i}:{147+4*i}], v1 offset:{(half*8+i)*4096}")
            a("s_waitcnt lgkmcnt(0)")
            for i in range(32):
                a(f"v_add_f32 v{V_ACC+half*32+i}, v{V_ACC+half*32+i}, v{144+i}")
    a("s_lshl_b32 s35, s30, 6")
    gemm_zero_acc(a)
    if 'v' in types:
        a("s_cmp_eq_u32 s5, 2")
        a(f"s_cbranch_scc1 {pfx}vpath")
    gemm_mainloop(a, NST, True, 48, 52, 128, 35, 36)
    a("s_nop 7")
    a("s_nop 7")
    combine("k")
    if 'm' in types:
        a("s_cmp_eq_u32 s5, 3")
        a(f"s_cbranch_scc1 {pfx}mlp")
    a("s_cmp_eq_u32 s5, 0")
    a(f"s_mov_b32 s36, {WS_K}")
    a(f"s_cselect_b32 s36, {WS_Q}, s36")
    a("v_lshrrev_b32 v1, 1, v7")
    a("v_lshlrev_b32 v1, 6, v1")
    a("v_and_b32 v8, 31, v6")
    a("s_lshl_b32 s34, s3, 7")
    a("v_add3_u32 v1, v1, v8, s34")
    a("v_lshlrev_b32 v12, 13, v1")
    a("v_and_b32 v1, 1, v7")
    a("v_lshlrev_b32 v1, 7, v1")
    a("v_lshrrev_b32 v8, 5, v6")
    a("v_lshlrev_b32 v8, 3, v8")
    a("s_lshl_b32 s34, s33, 8")
    a("v_add3_u32 v1, v1, v8, s34")
    a("v_add_u32 v12, v12, v1")
    a("v_add_u32 v13, 0x40000, v12")
    for mi in range(2):
        for ni in range(2):
            for rg in range(4):
                acc = V_ACC + 16 * (2 * mi + ni) + 4 * rg
                t = 16 + 2 * ((ni * 4 + rg) % 8)
                a(f"v_cvt_pk_bf16_f32 v{t}, v{acc}, v{acc+1}")
                a(f"v_cvt_pk_bf16_f32 v{t+1}, v{acc+2}, v{acc+3}")
                a(f"buffer_store_dwordx2 v[{t}:{t+1}], v{12+mi}, s[8:11], s36 offen offset:{ni*64+rg*16} {kvflag}")
    a(f"s_branch {pfx}done")
    if 'm' in types:
        a(f"{pfx}mlp:")
        srd(a, 40, 26, 27, 3584 * 2)
        a("s_mov_b32 s44, 0x3d372713")
        a("s_mov_b32 s45, 0xc0135761")
        a("v_lshrrev_b32 v1, 1, v7")
        a("v_lshlrev_b32 v1, 6, v1")
        a("v_and_b32 v8, 31, v6")
        a("s_lshl_b32 s34, s3, 7")
        a("v_add3_u32 v1, v1, v8, s34")
        a("s_mov_b32 s34, 7168")
        a("v_mul_lo_u32 v12, v1, s34")
        a("v_and_b32 v1, 1, v7")
        a("v_lshlrev_b32 v1, 7, v1")
        a("v_lshrrev_b32 v8, 5, v6")
        a("v_lshlrev_b32 v8, 3, v8")
        a("s_lshl_b32 s34, s33, 8")
        a("v_add3_u32 v14, v1, v8, s34")
        a("v_add_u32 v12, v12, v14")
        a(f"v_add_u32 v13, {32*7168}, v12")
        a(f"s_mov_b32 s36, {WS_H}")
        for ni in range(2):
            for rg in range(4):
                t = 16 + 2 * (ni * 4 + rg)
                a(f"buffer_load_dwordx2 v[{t}:{t+1}], v14, s[40:43], 0 offen offset:{ni*64+rg*16}")
        a("s_waitcnt vmcnt(0)")
        for mi in range(2):
            for ni in range(2):
                for rg in range(4):
                    acc = V_ACC + 16 * (2 * mi + ni) + 4 * rg
                    bt = 16 + 2 * (ni * 4 + rg)
                    for i in range(4):
                        bf16_round(a, acc + i, acc + i)
                        if i % 2 == 0:
                            a(f"v_lshlrev_b32 v32, 16, v{bt + i//2}")
                        else:
                            a(f"v_and_b32 v32, 0xffff0000, v{bt + i//2}")
                        a(f"v_add_f32 v{acc+i}, v{acc+i}, v32")
                        bf16_round(a, acc + i, acc + i)
                        gelu_tanh(a, acc + i, 33, 34)
                    a(f"v_cvt_pk_bf16_f32 v36, v{acc}, v{acc+1}")
                    a(f"v_cvt_pk_bf16_f32 v37, v{acc+2}, v{acc+3}")
                    a(f"buffer_store_dwordx2 v[36:37], v{12+mi}, s[8:11], s36 offen offset:{ni*64+rg*16} {hflag}")
                    a("s_nop 1")
        a(f"s_branch {pfx}done")
    if 'v' in types:
        a(f"{pfx}vpath:")
        gemm_mainloop(a, NST, False, 48, 52, 128, 35, 36)
        a("s_nop 7")
        a("s_nop 7")
        combine("v")
        a("v_lshrrev_b32 v1, 1, v7")
        a("v_lshlrev_b32 v1, 1, v1")
        a("s_lshl_b32 s34, s3, 2")
        a("v_add_u32 v1, s34, v1")
        a("v_lshlrev_b32 v1, 5, v1")
        a("v_add_u32 v1, s33, v1")
        a("v_lshlrev_b32 v1, 7, v1")
        a("v_and_b32 v8, 1, v7")
        a("v_lshlrev_b32 v8, 6, v8")
        a("v_and_b32 v9, 31, v6")
        a("v_add3_u32 v1, v1, v8, v9")
        a("v_lshlrev_b32 v12, 6, v1")
        a("v_lshrrev_b32 v8, 5, v6")
        a("v_lshlrev_b32 v8, 3, v8")
        a("v_add_u32 v12, v12, v8")
        a(f"v_add_u32 v13, {32*128*64}, v12")
        a(f"s_mov_b32 s36, {WS_VT}")
        for mi in range(2):
            for ni in range(2):
                for rg in range(4):
                    acc = V_ACC + 16 * (2 * mi + ni) + 4 * rg
                    t = 16 + 2 * ((ni * 4 + rg) % 8)
                    a(f"v_cvt_pk_bf16_f32 v{t}, v{acc}, v{acc+1}")
                    a(f"v_cvt_pk_bf16_f32 v{t+1}, v{acc+2}, v{acc+3}")
                    a(f"buffer_store_dwordx2 v[{t}:{t+1}], v{12+mi}, s[8:11], s36 offen offset:{ni*32*64+rg*16} {kvflag}")
    a(f"{pfx}done:")


def load_ptrs1(a):
    a(f"s_load_dwordx4 s[16:19], s[0:1], {KA['Wq']}")
    a(f"s_load_dwordx2 s[20:21], s[0:1], {KA['Wv']}")
    a(f"s_load_dwordx4 s[24:27], s[0:1], {KA['w1']}")
    a(f"s_load_dwordx2 s[28:29], s[0:1], {KA['ws']}")


def gen_gemm1(a):
    name = "gemm1_kernel"
    kernel_header(a, name)
    a("s_cmp_ge_u32 s2, 1024")
    a("s_cbranch_scc1 g1_done")
    load_ptrs1(a)
    a("s_and_b32 s3, s2, 15")
    a("s_lshr_b32 s4, s2, 4")
    a("s_add_u32 s4, s4, 32")
    a("s_waitcnt lgkmcnt(0)")
    tile1(a, "g1_", "kv")
    a("s_endpgm")
    return kernel_desc(name, 144, 64)
```

```python
from gen_common import *
import gemm as G1
from gemm import LDA_S, LDB_S, V_ST, V_F, V_ACC, V_ST2

L2_A = 64 * LDA_S
L2_B = 64 * LDB_S
L2_STAGE = L2_A + L2_B


def loads(a, sA, sB, V_ST=V_ST):
    for i in range(2):
        a(f"buffer_load_dwordx4 v[{V_ST+4*i}:{V_ST+4*i+3}], v10, s[8:11], s{sA+i} offen sc1")
    for i in range(4):
        a(f"buffer_load_dwordx4 v[{V_ST+16+4*i}:{V_ST+16+4*i+3}], v11, s[12:15], s{sB+i} offen")


def lds_write(a, buf, V_ST=V_ST):
    for i in range(2):
        a(f"ds_write_b128 v2, v[{V_ST+4*i}:{V_ST+4*i+3}] offset:{buf*L2_STAGE + i*32*LDA_S}")
    for i in range(4):
        a(f"ds_write_b128 v3, v[{V_ST+16+4*i}:{V_ST+16+4*i+3}] offset:{buf*L2_STAGE + i*16*LDB_S}")


def read_frags(a, buf, ks, fs):
    f = V_F + 16 * fs
    a(f"ds_read_b128 v[{f}:{f+3}], v4 offset:{buf*L2_STAGE + ks*32}")
    for ni in range(2):
        for half in range(2):
            a(f"ds_read_b64_tr_b16 v[{f+8+4*ni+2*half}:{f+8+4*ni+2*half+1}], v5 offset:{buf*L2_STAGE + (ks*16+4*half)*LDB_S + ni*64}")


def mfmas(a, fs):
    f = V_F + 16 * fs
    for ni in range(2):
        acc = V_ACC + 16 * ni
        a(f"v_mfma_f32_32x32x16_bf16 v[{acc}:{acc+15}], v[{f+8+4*ni}:{f+8+4*ni+3}], v[{f}:{f+3}], v[{acc}:{acc+15}]")


def adv(a, sA, sB):
    for i in range(2):
        a(f"s_add_u32 s{sA+i}, s{sA+i}, 128")
    for i in range(4):
        a(f"s_add_u32 s{sB+i}, s{sB+i}, {64*2048}")


def stage(a, buf, sA, sB):
    st = [V_ST, V_ST2]
    loads(a, sA, sB, st[buf])
    adv(a, sA, sB)
    read_frags(a, buf, 0, 0)
    for ks in range(4):
        if ks < 3:
            read_frags(a, buf, ks + 1, (ks + 1) & 1)
            a("s_waitcnt lgkmcnt(5)")
        else:
            a("s_waitcnt lgkmcnt(0)")
        mfmas(a, ks & 1)
    a("s_waitcnt vmcnt(6)")
    lds_write(a, buf ^ 1, st[buf ^ 1])
    a("s_waitcnt lgkmcnt(0)")
    a("s_barrier")


def mainloop(a, nstages, sA, sB, scnt):
    assert nstages % 2 == 0
    for i in range(32):
        a(f"v_mov_b32 v{V_ACC+i}, 0")
    loads(a, sA, sB, V_ST)
    adv(a, sA, sB)
    loads(a, sA, sB, V_ST2)
    adv(a, sA, sB)
    a("s_waitcnt vmcnt(6)")
    lds_write(a, 0, V_ST)
    a("s_waitcnt lgkmcnt(0)")
    a("s_barrier")
    lp = a.label("g2loop")
    a(f"s_mov_b32 s{scnt}, {nstages//2}")
    a(f"{lp}:")
    stage(a, 0, sA, sB)
    stage(a, 1, sA, sB)
    a(f"s_sub_u32 s{scnt}, s{scnt}, 1")
    a(f"s_cmp_lg_u32 s{scnt}, 0")
    a(f"s_cbranch_scc1 {lp}")
    a("s_waitcnt vmcnt(0)")
    a("s_nop 7")
    a("s_nop 7")


def outproj_body(a):
    a(f"s_load_dwordx2 s[16:17], s[0:1], {KA['Wo']}")
    a(f"s_load_dwordx4 s[20:23], s[0:1], {KA['w2']}")
    a(f"s_load_dwordx2 s[24:25], s[0:1], {KA['x']}")
    a(f"s_load_dwordx2 s[26:27], s[0:1], {KA['out']}")
    a(f"s_load_dwordx2 s[28:29], s[0:1], {KA['ws']}")
    a("v_and_b32 v6, 63, v0")
    a("v_lshrrev_b32 v7, 6, v0")
    a("v_lshrrev_b32 v1, 3, v0")
    a(f"v_mul_u32_u24 v2, {LDA_S}, v1")
    a("v_and_b32 v1, 7, v0")
    a("v_lshlrev_b32 v1, 4, v1")
    a("v_add_u32 v2, v2, v1")
    a("v_lshrrev_b32 v1, 4, v0")
    a(f"v_mul_u32_u24 v3, {LDB_S}, v1")
    a("v_and_b32 v1, 15, v0")
    a("v_lshlrev_b32 v1, 4, v1")
    a("v_add_u32 v3, v3, v1")
    a(f"v_add_u32 v3, {L2_A}, v3")
    a("v_lshrrev_b32 v1, 1, v7")
    a("v_lshlrev_b32 v1, 5, v1")
    a("v_and_b32 v8, 31, v6")
    a("v_add_u32 v1, v1, v8")
    a(f"v_mul_u32_u24 v4, {LDA_S}, v1")
    a("v_lshrrev_b32 v1, 5, v6")
    a("v_lshlrev_b32 v1, 4, v1")
    a("v_add_u32 v4, v4, v1")
    a("v_lshrrev_b32 v1, 5, v6")
    a("v_lshlrev_b32 v1, 3, v1")
    a("v_and_b32 v8, 15, v6")
    a("v_lshrrev_b32 v8, 2, v8")
    a("v_add_u32 v1, v1, v8")
    a(f"v_mul_u32_u24 v5, {LDB_S}, v1")
    a("v_and_b32 v1, 1, v7")
    a("v_lshlrev_b32 v1, 7, v1")
    a("v_bfe_u32 v8, v6, 4, 1")
    a("v_lshlrev_b32 v8, 5, v8")
    a("v_add_u32 v1, v1, v8")
    a("v_and_b32 v8, 3, v6")
    a("v_lshlrev_b32 v8, 3, v8")
    a("v_add3_u32 v5, v5, v1, v8")
    a(f"v_add_u32 v5, {L2_A}, v5")
    for r in (2, 3, 4, 5):
        a(f"v_add_u32 v{r}, s57, v{r}")
    a("s_waitcnt lgkmcnt(0)")
    srd(a, 8, 28, 29, WS_SIZE)
    a("v_lshrrev_b32 v1, 4, v0")
    a("v_lshlrev_b32 v11, 11, v1")
    a("v_and_b32 v1, 15, v0")
    a("v_lshlrev_b32 v1, 4, v1")
    a("s_lshl_b32 s34, s4, 8")
    a("v_add3_u32 v11, v11, v1, s34")
    srd(a, 12, 16, 17, 8 * MB)
    a("v_lshrrev_b32 v1, 3, v0")
    a("s_lshl_b32 s34, s3, 6")
    a("v_add_u32 v1, s34, v1")
    a("v_lshlrev_b32 v10, 13, v1")
    a("v_and_b32 v1, 7, v0")
    a("v_lshlrev_b32 v1, 4, v1")
    a("v_add_u32 v10, v10, v1")
    a("s_lshl_b32 s37, s59, 12")
    a("s_lshl_b32 s38, s59, 22")
    for i in range(2):
        a(f"s_add_u32 s{48+i}, s37, {WS_O + i*32*8192}")
    for i in range(4):
        a(f"s_add_u32 s{52+i}, s38, {16*i*2048}")
    mainloop(a, 32, 48, 52, 36)
    a("v_lshlrev_b32 v1, 4, v0")
    a("s_cmp_eq_u32 s59, 0")
    a("s_cbranch_scc1 op_h0a")
    for i in range(8):
        a(f"ds_write_b128 v1, v[{V_ACC+4*i}:{V_ACC+4*i+3}] offset:{i*4096}")
    a("op_h0a:")
    a("s_waitcnt lgkmcnt(0)")
    a("s_barrier")
    a("s_cmp_lg_u32 s59, 0")
    a("s_cbranch_scc1 op_skip")
    for i in range(8):
        a(f"ds_read_b128 v[{144+4*i}:{147+4*i}], v1 offset:{i*4096}")
    a("s_waitcnt lgkmcnt(0)")
    for i in range(32):
        a(f"v_add_f32 v{V_ACC+i}, v{V_ACC+i}, v{144+i}")
    for i in range(32):
        bf16_round(a, 144 + i, V_ACC + i)
    srd(a, 12, 24, 25, 4 * MB)
    srd(a, 20, 26, 27, 4 * MB)
    a("v_and_b32 v1, 1, v7")
    a("v_lshlrev_b32 v1, 7, v1")
    a("v_lshrrev_b32 v8, 5, v6")
    a("v_lshlrev_b32 v8, 3, v8")
    a("s_lshl_b32 s34, s4, 8")
    a("v_add3_u32 v14, v1, v8, s34")
    a("v_lshrrev_b32 v1, 1, v7")
    a("v_lshlrev_b32 v1, 5, v1")
    a("v_and_b32 v8, 31, v6")
    a("s_lshl_b32 s34, s3, 6")
    a("v_add3_u32 v1, v1, v8, s34")
    a("v_lshlrev_b32 v12, 11, v1")
    a("v_add_u32 v12, v12, v14")
    a(f"s_mov_b32 s36, {WS_BP}")
    for ni in range(2):
        for rg in range(4):
            t = 16 + 2 * (ni * 4 + rg)
            a(f"buffer_load_dwordx2 v[{t}:{t+1}], v12, s[8:11], s36 offen offset:{ni*64+rg*16} sc1")
            a(f"buffer_load_dwordx2 v[{t+16}:{t+17}], v12, s[12:15], 0 offen offset:{ni*64+rg*16}")
    a("s_waitcnt vmcnt(0)")
    for ni in range(2):
        for rg in range(4):
            acc = V_ACC + 16 * ni + 4 * rg
            sa = 144 + 16 * ni + 4 * rg
            bt = 16 + 2 * (ni * 4 + rg)
            for i in range(4):
                if i % 2 == 0:
                    a(f"v_lshlrev_b32 v48, 16, v{bt + i//2}")
                    a(f"v_lshlrev_b32 v49, 16, v{bt + 16 + i//2}")
                else:
                    a(f"v_and_b32 v48, 0xffff0000, v{bt + i//2}")
                    a(f"v_and_b32 v49, 0xffff0000, v{bt + 16 + i//2}")
                a(f"v_add_f32 v49, v49, v{sa+i}")
                bf16_round(a, 49, 49)
                a(f"v_add_f32 v{acc+i}, v48, v49")
            a(f"v_cvt_pk_bf16_f32 v50, v{acc}, v{acc+1}")
            a(f"v_cvt_pk_bf16_f32 v51, v{acc+2}, v{acc+3}")
            a(f"buffer_store_dwordx2 v[50:51], v12, s[20:23], 0 offen offset:{ni*64+rg*16}")
            a("s_nop 1")
    a("op_skip:")
    a("s_barrier")
```

```python
from gen_common import *

L_KX = 0
L_VTX = 8704
L_Q = 17920
L_KM = 20096
L_VTM = 22272
L_OX = 24320
L_RED = 28416
L_END = L_RED + 49152
REC_LDS = 2 * 77824

V_W1 = 128
V_W2 = 224
SPIN_MAX = 1 << 21
SCALE_BITS = 0x3db504f3
LOG2E = 0x3fb8aa3b
STAMP = False
SLEEP = 0


def stamp(a, idx):
    if not STAMP:
        return
    a(f"s_memtime s[{50+2*idx}:{51+2*idx}]")


def any_sentinel(a, regs, vt):
    regs = list(regs)
    a(f"v_max_u32 v{vt}, v{regs[0]}, v{regs[1]}")
    i = 2
    while i < len(regs):
        if i + 1 < len(regs):
            a(f"v_max3_u32 v{vt}, v{vt}, v{regs[i]}, v{regs[i+1]}")
            i += 2
        else:
            a(f"v_max_u32 v{vt}, v{vt}, v{regs[i]}")
            i += 1
    a(f"v_cmp_eq_u32 vcc, -1, v{vt}")


def poll_tail(a, top, done):
    a("s_cbranch_vccz " + done)
    a("s_add_u32 s19, s19, 1")
    if SLEEP:
        a(f"s_sleep {SLEEP}")
    a(f"s_cmp_lt_u32 s19, s20")
    a("s_cbranch_scc1 " + top)
    a("s_mov_b32 s20, 0")
    a(f"{done}:")


def canon(a, v):
    a(f"v_cmp_eq_u32 vcc, -1, v{v}")
    a("s_nop 1")
    a(f"v_cndmask_b32 v{v}, v{v}, v25, vcc")


def xlane_reduce(a, op, v, t):
    a(f"v_mov_b32 v{t}, v{v}")
    a("s_nop 1")
    a(f"v_permlane16_swap_b32 v{v}, v{t}")
    a(f"{op} v{v}, v{v}, v{t}")
    a(f"v_mov_b32 v{t}, v{v}")
    a("s_nop 1")
    a(f"v_permlane32_swap_b32 v{v}, v{t}")
    a(f"{op} v{v}, v{v}, v{t}")


def gen_rec(a):
    name = "rec_kernel"
    kernel_header(a, name)
    a("s_cmp_ge_u32 s2, 256")
    a("s_cbranch_scc1 rec_done")
    a("s_cmp_ge_u32 s2, 128")
    a("s_cbranch_scc1 rec_worker")
    a(f"s_load_dwordx2 s[4:5], s[0:1], {KA['ws']}")
    a(f"s_load_dwordx2 s[6:7], s[0:1], {KA['mem0']}")
    a(f"s_load_dwordx4 s[24:27], s[0:1], {KA['Wq']}")
    a(f"s_load_dwordx4 s[28:31], s[0:1], {KA['Wv']}")
    a("s_lshr_b32 s16, s2, 2")
    a("s_and_b32 s17, s2, 3")
    a(f"s_mov_b32 s20, {SPIN_MAX}")
    a("v_and_b32 v1, 63, v0")
    a("v_lshrrev_b32 v2, 6, v0")
    a("v_and_b32 v3, 15, v1")
    a("v_lshrrev_b32 v4, 4, v1")
    a("s_waitcnt lgkmcnt(0)")
    srd(a, 8, 4, 5, WS_SIZE)
    a("v_lshlrev_b32 v5, 7, v2")
    a("v_lshrrev_b32 v6, 2, v1")
    a("v_add_u32 v5, v5, v6")
    a("v_lshlrev_b32 v5, 13, v5")
    a("v_and_b32 v6, 3, v1")
    a("v_lshlrev_b32 v6, 4, v6")
    a("s_lshl_b32 s21, s16, 8")
    a("s_lshl_b32 s22, s17, 6")
    a("s_add_u32 s21, s21, s22")
    a("v_add3_u32 v5, v5, v6, s21")
    a("v_lshlrev_b32 v7, 13, v2")
    a("v_lshlrev_b32 v6, 4, v1")
    a("v_add_u32 v7, v7, v6")
    a("v_lshlrev_b32 v8, 3, v4")
    a("v_lshrrev_b32 v6, 2, v3")
    a("v_add_u32 v8, v8, v6")
    a("v_lshlrev_b32 v8, 6, v8")
    a("v_and_b32 v6, 3, v1")
    a("v_lshlrev_b32 v6, 3, v6")
    a("v_add_u32 v8, v8, v6")
    a("v_lshlrev_b32 v6, 13, v2")
    a("v_add_u32 v8, v8, v6")
    for mat, (lo, hi) in enumerate(((24, 25), (26, 27), (28, 29))):
        srd(a, 12, lo, hi, 8 * MB)
        for i in range(8):
            a(f"s_mov_b32 s21, {i*16*8192}")
            a(f"buffer_load_dwordx4 v[{32+4*i}:{35+4*i}], v5, s[12:15], s21 offen")
        a("s_waitcnt vmcnt(0)")
        for i in range(8):
            a(f"ds_write_b128 v7, v[{32+4*i}:{35+4*i}] offset:{i*1024}")
        a("s_waitcnt lgkmcnt(0)")
        for nt in range(2):
            for ks in range(4):
                for hf in range(2):
                    r = V_W1 + ((mat * 2 + nt) * 4 + ks) * 4 + 2 * hf
                    a(f"ds_read_b64_tr_b16 v[{r}:{r+1}], v8 offset:{(32*ks+4*hf)*64 + nt*32}")
        a("s_waitcnt lgkmcnt(0)")
    srd(a, 12, 30, 31, 8 * MB)
    a("v_lshrrev_b32 v5, 2, v1")
    a("s_lshl_b32 s21, s16, 7")
    a("v_add_u32 v5, s21, v5")
    a("v_lshlrev_b32 v5, 11, v5")
    a("v_and_b32 v6, 3, v1")
    a("v_lshlrev_b32 v6, 4, v6")
    a("v_lshlrev_b32 v9, 6, v2")
    a("s_lshl_b32 s21, s17, 9")
    a("v_add3_u32 v5, v5, v6, s21")
    a("v_add_u32 v5, v5, v9")
    for i in range(8):
        a(f"s_mov_b32 s21, {i*16*2048}")
        a(f"buffer_load_dwordx4 v[{32+4*i}:{35+4*i}], v5, s[12:15], s21 offen")
    a("s_waitcnt vmcnt(0)")
    for i in range(8):
        a(f"ds_write_b128 v7, v[{32+4*i}:{35+4*i}] offset:{i*1024}")
    a("v_lshlrev_b32 v8, 2, v4")
    a("v_lshrrev_b32 v6, 2, v3")
    a("v_add_u32 v8, v8, v6")
    a("v_lshlrev_b32 v8, 6, v8")
    a("v_and_b32 v6, 3, v1")
    a("v_lshlrev_b32 v6, 3, v6")
    a("v_add_u32 v8, v8, v6")
    a("v_lshlrev_b32 v6, 13, v2")
    a("v_add_u32 v8, v8, v6")
    a("s_waitcnt lgkmcnt(0)")
    for t in range(2):
        for s in range(4):
            for hf in range(2):
                r = V_W2 + (t * 4 + s) * 4 + 2 * hf
                a(f"ds_read_b64_tr_b16 v[{r}:{r+1}], v8 offset:{(32*s+16*hf)*64 + t*32}")
    a("s_waitcnt lgkmcnt(0)")
    a("s_barrier")
    a("v_lshlrev_b32 v5, 11, v3")
    a("v_lshlrev_b32 v6, 8, v2")
    a("v_lshlrev_b32 v7, 4, v4")
    a("v_add3_u32 v5, v5, v6, v7")
    a("v_lshlrev_b32 v28, 4, v2")
    a("v_add_u32 v28, v28, v4")
    a("v_lshlrev_b32 v28, 3, v28")
    a("v_add_u32 v28, v28, v3")
    a("v_lshlrev_b32 v28, 4, v28")
    a("v_lshrrev_b32 v6, 4, v0")
    a("v_lshlrev_b32 v6, 13, v6")
    a("v_and_b32 v7, 15, v0")
    a("v_lshlrev_b32 v7, 4, v7")
    a("s_lshl_b32 s21, s16, 8")
    a("v_add3_u32 v6, v6, v7, s21")
    a("v_lshrrev_b32 v7, 4, v0")
    a("v_mul_u32_u24 v7, 272, v7")
    a("v_and_b32 v8, 15, v0")
    a("v_lshlrev_b32 v8, 4, v8")
    a("v_add_u32 v7, v7, v8")
    a("v_lshlrev_b32 v8, 4, v0")
    a("s_lshl_b32 s21, s16, 13")
    a("v_add_u32 v8, s21, v8")
    a("v_lshrrev_b32 v9, 2, v0")
    a("v_mul_u32_u24 v9, 72, v9")
    a("v_and_b32 v10, 3, v0")
    a("v_lshlrev_b32 v10, 4, v10")
    a("v_add_u32 v9, v9, v10")
    a(f"v_add_u32 v9, {L_VTX}, v9")
    a("v_mul_u32_u24 v10, 384, v2")
    a("v_add_u32 v10, v10, v1")
    a("v_lshlrev_b32 v10, 4, v10")
    a(f"v_add_u32 v10, {L_RED}, v10")
    a("v_lshrrev_b32 v11, 7, v0")
    a("v_lshlrev_b32 v11, 1, v11")
    a("v_bfe_u32 v12, v0, 3, 1")
    a("v_add_u32 v11, v11, v12")
    a("v_lshlrev_b32 v11, 6, v11")
    a("v_bfe_u32 v12, v0, 1, 2")
    a("v_lshlrev_b32 v12, 4, v12")
    a("v_add_u32 v11, v11, v12")
    a("v_bfe_u32 v12, v0, 4, 3")
    a("v_add_u32 v11, v11, v12")
    a("v_lshlrev_b32 v11, 4, v11")
    a("v_and_b32 v12, 1, v0")
    a("v_lshlrev_b32 v12, 3, v12")
    a("v_add_u32 v11, v11, v12")
    a(f"v_add_u32 v11, {L_RED}, v11")
    a("v_add_u32 v12, 4, v11")
    a("v_subrev_u32 v14, 0x100, v0")
    a("v_bfe_u32 v15, v14, 7, 1")
    a("v_add_u32 v15, 4, v15")
    a("v_lshlrev_b32 v15, 6, v15")
    a("v_bfe_u32 v16, v14, 5, 2")
    a("v_lshlrev_b32 v16, 4, v16")
    a("v_add_u32 v15, v15, v16")
    a("v_and_b32 v16, 7, v14")
    a("v_add_u32 v15, v15, v16")
    a("v_lshlrev_b32 v15, 4, v15")
    a("v_bfe_u32 v16, v14, 3, 2")
    a("v_lshlrev_b32 v16, 2, v16")
    a("v_add_u32 v15, v15, v16")
    a(f"v_add_u32 v15, {L_RED}, v15")
    a("v_lshlrev_b32 v13, 2, v0")
    a("v_lshrrev_b32 v16, 1, v14")
    a("v_lshlrev_b32 v16, 2, v16")
    a("v_add_u32 v16, 0x400, v16")
    a("v_cmp_le_u32 vcc, 0x100, v0")
    a("s_nop 1")
    a("v_cndmask_b32 v11, v11, v15, vcc")
    a("v_cndmask_b32 v13, v13, v16, vcc")
    a("s_mul_i32 s21, s17, 1536")
    a("v_add_u32 v13, s21, v13")
    a("v_lshlrev_b32 v14, 4, v0")
    a("v_mul_u32_u24 v18, 683, v0")
    a("v_lshrrev_b32 v18, 16, v18")
    a("v_mul_u32_u24 v19, 96, v18")
    a("v_sub_u32 v19, v0, v19")
    a("v_lshrrev_b32 v20, 5, v19")
    a("v_and_b32 v21, 31, v19")
    a("v_lshlrev_b32 v22, 3, v20")
    a("v_lshrrev_b32 v23, 2, v21")
    a("v_add_u32 v22, v22, v23")
    a("v_mul_u32_u24 v22, 272, v22")
    a("v_lshlrev_b32 v23, 6, v18")
    a("v_add_u32 v22, v22, v23")
    a("v_and_b32 v23, 3, v21")
    a("v_lshlrev_b32 v23, 4, v23")
    a("v_add_u32 v22, v22, v23")
    a(f"v_add_u32 v22, {L_Q}, v22")
    a("v_lshlrev_b32 v23, 5, v18")
    a("v_add_u32 v23, v23, v21")
    a("v_lshlrev_b32 v23, 4, v23")
    a(f"v_add_u32 v23, {L_VTM}, v23")
    a("v_cmp_eq_u32 vcc, 2, v20")
    a("s_nop 1")
    a("v_cndmask_b32 v15, v22, v23, vcc")
    a("v_mul_u32_u24 v17, 272, v3")
    a("v_lshlrev_b32 v18, 4, v4")
    a("v_add_u32 v17, v17, v18")
    a("v_lshlrev_b32 v18, 4, v2")
    a("v_add_u32 v18, v18, v3")
    a("v_lshlrev_b32 v19, 4, v18")
    a("v_mul_u32_u24 v18, 72, v18")
    a("v_lshlrev_b32 v20, 3, v4")
    a("v_add_u32 v18, v18, v20")
    a(f"v_add_u32 v18, {L_VTX}, v18")
    a("v_and_b32 v20, 1, v4")
    a("v_lshlrev_b32 v20, 3, v20")
    a("v_add_u32 v19, v19, v20")
    a(f"v_add_u32 v19, {L_VTM}, v19")
    a("v_lshlrev_b32 v16, 3, v0")
    a(f"v_add_u32 v16, {L_OX}, v16")
    a("v_lshlrev_b32 v20, 3, v1")
    a(f"v_add_u32 v20, {L_OX}, v20")
    a("v_lshlrev_b32 v22, 3, v2")
    a("v_add_u32 v22, v22, v4")
    a("v_lshlrev_b32 v22, 3, v22")
    a("v_add_u32 v22, v22, v3")
    a("v_lshlrev_b32 v22, 4, v22")
    a("s_lshl_b32 s21, s17, 5")
    a("s_add_u32 s21, s21, s16")
    a("s_lshl_b32 s21, s21, 13")
    a("v_add_u32 v22, s21, v22")
    a("v_lshlrev_b32 v23, 13, v4")
    a("v_lshlrev_b32 v24, 4, v3")
    a("s_lshl_b32 s21, s17, 18")
    a("s_lshl_b32 s22, s16, 8")
    a("s_add_u32 s21, s21, s22")
    a("v_add3_u32 v23, v23, v24, s21")
    a("v_and_b32 v24, 7, v1")
    a("v_lshlrev_b32 v24, 4, v24")
    a("v_bfe_u32 v25, v1, 3, 1")
    a("v_lshlrev_b32 v25, 3, v25")
    a("s_lshl_b32 s21, s17, 12")
    a("s_lshl_b32 s22, s16, 7")
    a("s_add_u32 s21, s21, s22")
    a("v_add3_u32 v24, v24, v25, s21")
    a("v_mov_b32 v26, -1")
    a("v_mov_b32 v25, 0x7fc07fc0")
    a("s_mov_b32 s18, 0")
    srd(a, 12, 6, 7, 16384)
    a("v_cmp_gt_u32 vcc, 8, v3")
    a("s_and_saveexec_b64 s[32:33], vcc")
    for ks in range(4):
        a(f"buffer_load_dwordx4 v[{32+4*ks}:{35+4*ks}], v5, s[12:15], 0 offen offset:{ks*64}")
    a("s_mov_b64 exec, s[32:33]")
    a("rec_step:")
    stamp(a, 0)
    a("s_and_b32 s21, s18, 3")
    a("s_cmp_lg_u32 s21, 0")
    a("s_cbranch_scc1 rec_kvok")
    a(f"s_add_u32 s21, s18, {WS_CNT}")
    a("v_mov_b32 v27, s21")
    a("s_mov_b32 s19, 0")
    a("rec_kvw:")
    a("buffer_load_dword v29, v27, s[8:11], 0 offen sc1")
    a("s_waitcnt vmcnt(0)")
    a("v_cmp_gt_u32 vcc, 64, v29")
    a("s_cbranch_vccz rec_kvok")
    a("s_sleep 32")
    a("s_add_u32 s19, s19, 1")
    a("s_cmp_lt_u32 s19, 0x80000")
    a("s_cbranch_scc1 rec_kvw")
    a("rec_kvok:")
    a("s_lshl_b32 s21, s18, 18")
    a(f"s_add_u32 s21, s21, {WS_K}")
    a("buffer_load_dwordx4 v[112:115], v6, s[8:11], s21 offen sc1")
    a("s_lshl_b32 s21, s18, 18")
    a(f"s_add_u32 s21, s21, {WS_VT}")
    a("buffer_load_dwordx4 v[120:123], v8, s[8:11], s21 offen sc1")
    a("s_cmp_eq_u32 s18, 0")
    a("s_cbranch_scc1 rec_p1s")
    a("s_lshl_b32 s21, s18, 14")
    a(f"s_add_u32 s21, s21, {WS_MEM}")
    a("s_mov_b32 s19, 0")
    a("v_cmp_gt_u32 vcc, 8, v3")
    a("s_and_saveexec_b64 s[32:33], vcc")
    a("rec_p1:")
    for ks in range(4):
        a(f"buffer_load_dwordx4 v[{32+4*ks}:{35+4*ks}], v28, s[8:11], s21 offen offset:{ks*512} sc1")
    a("s_waitcnt vmcnt(0)")
    any_sentinel(a, range(32, 48), 27)
    poll_tail(a, "rec_p1", "rec_p1d")
    a("s_mov_b64 exec, s[32:33]")
    a("rec_p1s:")
    a("s_waitcnt vmcnt(0)")
    stamp(a, 1)
    for ks in range(4):
        for tl in range(6):
            w = V_W1 + (tl * 4 + ks) * 4
            c = "0" if ks == 0 else f"v[{64+4*tl}:{67+4*tl}]"
            a(f"v_mfma_f32_16x16x32_bf16 v[{64+4*tl}:{67+4*tl}], v[{w}:{w+3}], v[{32+4*ks}:{35+4*ks}], {c}")
    a("ds_write_b128 v7, v[112:115]")
    a("ds_write_b128 v9, v[120:123]")
    a("s_nop 7")
    for tl in range(6):
        a(f"ds_write_b128 v10, v[{64+4*tl}:{67+4*tl}] offset:{tl*1024}")
    a("s_waitcnt lgkmcnt(0)")
    a("s_barrier")
    stamp(a, 2)
    a("s_mul_i32 s21, s18, 196608")
    a("s_mul_i32 s22, s16, 6144")
    a("s_add_u32 s21, s21, s22")
    a(f"s_add_u32 s21, s21, {WS_QKVM}")
    a("v_readfirstlane_b32 s22, v2")
    a("s_cmp_ge_u32 s22, 4")
    a("s_cbranch_scc1 rec_pubv")
    for wv in range(8):
        a(f"ds_read_b64 v[{32+2*wv}:{33+2*wv}], v11 offset:{wv*6144}")
    a("s_waitcnt lgkmcnt(0)")
    for st in (2, 4, 8):
        for b in range(0, 16, 2 * st):
            a(f"v_add_f32 v{32+b}, v{32+b}, v{32+b+st}")
            a(f"v_add_f32 v{33+b}, v{33+b}, v{33+b+st}")
    a("v_cvt_pk_bf16_f32 v32, v32, v33")
    canon(a, 32)
    a("buffer_store_dword v32, v13, s[8:11], s21 offen sc1")
    a("s_branch rec_pubd")
    a("rec_pubv:")
    for wv in range(8):
        a(f"ds_read_b32 v{32+wv}, v11 offset:{wv*6144}")
    a("s_waitcnt lgkmcnt(0)")
    for st in (1, 2, 4):
        for b in range(0, 8, 2 * st):
            a(f"v_add_f32 v{32+b}, v{32+b}, v{32+b+st}")
    a("s_nop 1")
    a("v_mov_b32_dpp v33, v32 quad_perm:[1,0,3,2] row_mask:0xf bank_mask:0xf")
    a("v_cvt_pk_bf16_f32 v32, v32, v33")
    canon(a, 32)
    a("v_and_b32 v33, 1, v1")
    a("v_cmp_eq_u32 vcc, 0, v33")
    a("s_and_saveexec_b64 s[32:33], vcc")
    a("buffer_store_dword v32, v13, s[8:11], s21 offen sc1")
    a("s_mov_b64 exec, s[32:33]")
    a("rec_pubd:")
    a("v_cmp_gt_u32 vcc, 0x180, v0")
    a("s_and_saveexec_b64 s[32:33], vcc")
    a("s_cbranch_execz rec_skip_pub")
    stamp(a, 3)
    a("s_mov_b32 s19, 0")
    a("rec_p2:")
    a("buffer_load_dwordx4 v[32:35], v14, s[8:11], s21 offen sc1")
    a("s_waitcnt vmcnt(0)")
    any_sentinel(a, range(32, 36), 27)
    poll_tail(a, "rec_p2", "rec_p2d")
    a("ds_write_b128 v15, v[32:35]")
    a("rec_skip_pub:")
    a("s_mov_b64 exec, s[32:33]")
    a("s_waitcnt lgkmcnt(0)")
    a("s_barrier")
    stamp(a, 4)
    for ks in range(4):
        a(f"ds_read_b128 v[{32+4*ks}:{35+4*ks}], v17 offset:{L_Q + ks*64}")
        a(f"ds_read_b128 v[{80+4*ks}:{83+4*ks}], v17 offset:{L_KM + ks*64}")
        a(f"ds_read_b128 v[{48+4*ks}:{51+4*ks}], v17 offset:{L_KX + ks*64}")
        a(f"ds_read_b128 v[{64+4*ks}:{67+4*ks}], v17 offset:{L_KX + 16*272 + ks*64}")
    a(f"ds_read_b64 v[112:113], v18")
    a(f"ds_read_b64 v[114:115], v18 offset:32")
    a(f"ds_read_b64 v[116:117], v19")
    a(f"s_mov_b32 s21, {SCALE_BITS}")
    a(f"s_mov_b32 s22, {LOG2E}")
    for ks in range(4):
        a(f"s_waitcnt lgkmcnt({15-4*ks})")
        for t in range(3):
            c = "0" if ks == 0 else f"v[{96+4*t}:{99+4*t}]"
            a(f"v_mfma_f32_16x16x32_bf16 v[{96+4*t}:{99+4*t}], v[{48+16*t+4*ks}:{51+16*t+4*ks}], v[{32+4*ks}:{35+4*ks}], {c}")
    a("v_cmp_gt_u32 vcc, 2, v4")
    a("v_mov_b32 v27, 0xff800000")
    a("s_nop 7")
    for i in range(6):
        a(f"v_cvt_pk_bf16_f32 v{80+i}, v{96+2*i}, v{97+2*i}")
    for i in range(6):
        a(f"v_lshlrev_b32 v{96+2*i}, 16, v{80+i}")
        a(f"v_and_b32 v{97+2*i}, 0xffff0000, v{80+i}")
    for i in range(12):
        a(f"v_mul_f32 v{96+i}, s21, v{96+i}")
    for i in range(6):
        a(f"v_cvt_pk_bf16_f32 v{80+i}, v{96+2*i}, v{97+2*i}")
    for i in range(6):
        a(f"v_lshlrev_b32 v{96+2*i}, 16, v{80+i}")
        a(f"v_and_b32 v{97+2*i}, 0xffff0000, v{80+i}")
    for i in range(4):
        a(f"v_cndmask_b32 v{104+i}, v27, v{104+i}, vcc")
    a("v_max3_f32 v27, v96, v97, v98")
    a("v_max3_f32 v29, v99, v100, v101")
    a("v_max3_f32 v27, v27, v102, v103")
    a("v_max3_f32 v29, v29, v104, v105")
    a("v_max3_f32 v27, v27, v106, v107")
    a("v_max_f32 v27, v27, v29")
    xlane_reduce(a, "v_max_f32", 27, 29)
    a("v_mul_f32 v27, s22, v27")
    for i in range(12):
        a(f"v_fma_f32 v{96+i}, v{96+i}, s22, -v27")
    for i in range(12):
        a(f"v_exp_f32 v{96+i}, v{96+i}")
    a("s_nop 0")
    a("v_add_f32 v27, v96, v97")
    a("v_add_f32 v29, v98, v99")
    for i in range(4, 12, 2):
        a(f"v_add_f32 v27, v27, v{96+i}")
        a(f"v_add_f32 v29, v29, v{97+i}")
    a("v_add_f32 v27, v27, v29")
    xlane_reduce(a, "v_add_f32", 27, 29)
    a("v_rcp_f32 v27, v27")
    a("s_nop 0")
    for i in range(12):
        a(f"v_mul_f32 v{96+i}, v{96+i}, v27")
    for i in range(6):
        a(f"v_cvt_pk_bf16_f32 v{106+i}, v{96+2*i}, v{97+2*i}") if False else None
    for i in range(6):
        a(f"v_cvt_pk_bf16_f32 v{120+i}, v{96+2*i}, v{97+2*i}")
    a("s_waitcnt lgkmcnt(0)")
    a("s_nop 0")
    a("v_mfma_f32_16x16x32_bf16 v[96:99], v[112:115], v[120:123], 0")
    a("v_mfma_f32_16x16x16_bf16 v[104:107], v[116:117], v[124:125], 0")
    a("s_nop 7")
    a("s_nop 1")
    for i in range(4):
        a(f"v_add_f32 v{96+i}, v{96+i}, v{104+i}")
    a("v_cvt_pk_bf16_f32 v100, v96, v97")
    a("v_cvt_pk_bf16_f32 v101, v98, v99")
    a("ds_write_b64 v16, v[100:101]")
    if STAMP:
        a("s_cmp_lg_u32 s18, 0")
        a("s_cbranch_scc1 rec_nodbg")
        a("v_lshlrev_b32 v102, 3, v0")
        a("s_lshl_b32 s23, s2, 12")
        a(f"s_add_u32 s23, s23, {WS_DBG + 4*MB}")
        a("buffer_store_dwordx2 v[100:101], v102, s[8:11], s23 offen")
        a("rec_nodbg:")
    a("s_waitcnt lgkmcnt(0)")
    a("s_barrier")
    stamp(a, 5)
    a("s_cmp_eq_u32 s18, 63")
    a("s_cbranch_scc1 rec_done")
    for et in range(8):
        a(f"ds_read_b64 v[{40+2*et}:{41+2*et}], v20 offset:{et*512}")
    a("s_and_b32 s21, s18, 1")
    a("s_lshl_b32 s21, s21, 20")
    a(f"s_add_u32 s21, s21, {WS_PART}")
    for s in range(4):
        a(f"s_waitcnt lgkmcnt({6-2*s})")
        for t in range(2):
            w = V_W2 + (t * 4 + s) * 4
            c = "0" if s == 0 else f"v[{56+4*t}:{59+4*t}]"
            a(f"v_mfma_f32_16x16x32_bf16 v[{56+4*t}:{59+4*t}], v[{w}:{w+3}], v[{40+4*s}:{43+4*s}], {c}")
    a("s_nop 7")
    a("s_nop 1")
    for i in range(8):
        a(f"v_cmp_eq_u32 vcc, -1, v{56+i}")
        a("s_nop 1")
        a(f"v_cndmask_b32 v{56+i}, v{56+i}, v25, vcc")
    a("v_cmp_gt_u32 vcc, 8, v3")
    a("s_and_saveexec_b64 s[32:33], vcc")
    a("buffer_store_dwordx4 v[56:59], v22, s[8:11], s21 offen sc1")
    a("buffer_store_dwordx4 v[60:63], v22, s[8:11], s21 offen offset:512 sc1")
    a("s_mov_b64 exec, s[32:33]")
    stamp(a, 6)
    a("v_readfirstlane_b32 s22, v2")
    a("s_cmp_lg_u32 s22, 0")
    a("s_cbranch_scc1 rec_next")
    a("s_mov_b32 s19, 0")
    a("rec_p3:")
    a("s_mov_b32 s22, s21")
    for i in range(8):
        a(f"buffer_load_dwordx4 v[{64+4*i}:{67+4*i}], v23, s[8:11], s22 offen sc1")
        if i < 7:
            a("s_add_u32 s22, s22, 32768")
    a("s_waitcnt vmcnt(0)")
    any_sentinel(a, range(64, 96), 27)
    poll_tail(a, "rec_p3", "rec_p3d")
    stamp(a, 7)
    for st in (4, 8, 16):
        for b in range(0, 32, 2 * st):
            for c in range(4):
                a(f"v_add_f32 v{64+b+c}, v{64+b+c}, v{64+b+st+c}")
    for c in range(4):
        xlane_reduce(a, "v_add_f32", 64 + c, 68 + c)
    a("v_cvt_pk_bf16_f32 v40, v64, v65")
    a("v_cvt_pk_bf16_f32 v41, v66, v67")
    canon(a, 40)
    canon(a, 41)
    a("s_add_u32 s22, s18, 1")
    a("s_lshl_b32 s22, s22, 14")
    a(f"s_add_u32 s22, s22, {WS_MEM}")
    a("v_cmp_gt_u32 vcc, 16, v1")
    a("s_and_saveexec_b64 s[32:33], vcc")
    a("buffer_store_dwordx2 v[40:41], v24, s[8:11], s22 offen sc1")
    a("s_mov_b64 exec, s[32:33]")
    stamp(a, 8)
    a("v_mov_b32 v64, -1")
    a("v_mov_b32 v65, -1")
    a("v_mov_b32 v66, -1")
    a("v_mov_b32 v67, -1")
    a("s_mov_b32 s22, s21")
    for i in range(8):
        a(f"buffer_store_dwordx4 v[64:67], v23, s[8:11], s22 offen sc1")
        if i < 7:
            a("s_add_u32 s22, s22, 32768")
    if STAMP:
        a("s_waitcnt lgkmcnt(0)")
        a("s_lshl_b32 s22, s18, 7")
        a("s_lshl_b32 s23, s2, 13")
        a("s_add_u32 s22, s22, s23")
        a(f"s_add_u32 s22, s22, {WS_DBG}")
        for i in range(9):
            a(f"v_mov_b32 v40, s{50+2*i}")
            a(f"v_mov_b32 v41, 0")
            a(f"buffer_store_dword v40, v41, s[8:11], s22 offen offset:{4*i}")
    a("rec_next:")
    a("s_add_u32 s18, s18, 1")
    a("s_branch rec_step")
    a("rec_worker:")
    import worker
    worker.gen_worker(a)
    a("rec_done:")
    a("s_endpgm")
    return kernel_desc(name, 256, 96)
```

```python
from gen_common import *
import gemm as G1
from gemm import *
import gemm2 as G2
import attn as AT

C_KV, C_M, C_Q, C_B, C_O = 0, 64, 128, 192, 256


def signal(a, soff):
    a("s_waitcnt vmcnt(0)")
    a("s_barrier")
    a("v_mov_b32 v1, 1")
    a(f"s_add_u32 s5, s{soff}, {WS_CNT}")
    a("v_mov_b32 v2, s5")
    a("v_cmp_eq_u32 vcc, 0, v0")
    a("s_and_saveexec_b64 s[46:47], vcc")
    a("buffer_atomic_add v1, v2, s[8:11], 0 offen sc1")
    a("s_mov_b64 exec, s[46:47]")


def wait_cnt(a, soff, target, sleep=48):
    top = a.label("wk_w")
    go = a.label("wk_g")
    a(f"s_add_u32 s5, s{soff}, {WS_CNT}")
    a("v_mov_b32 v2, s5")
    a("s_mov_b32 s6, 0")
    a("v_lshrrev_b32 v1, 6, v0")
    a("s_nop 1")
    a("v_readfirstlane_b32 s75, v1")
    a("s_nop 3")
    a("s_cmp_lg_u32 s75, 0")
    a(f"s_cbranch_scc1 {go}")
    a(f"{top}:")
    a("buffer_load_dword v1, v2, s[8:11], 0 offen sc1")
    a("s_waitcnt vmcnt(0)")
    a(f"v_cmp_le_u32 vcc, {target}, v1")
    a(f"s_cbranch_vccnz {go}")
    a(f"s_sleep {sleep}")
    a("s_add_u32 s6, s6, 1")
    a("s_cmp_lt_u32 s6, 0x80000")
    a(f"s_cbranch_scc1 {top}")
    a(f"{go}:")
    a("s_barrier")


def wstamp(a, idx):
    import rec
    if not rec.STAMP:
        return
    a("s_memrealtime s[70:71]")
    a("s_waitcnt lgkmcnt(0)")
    a("v_mov_b32 v1, s70")
    a(f"s_lshl_b32 s72, s60, 6")
    a(f"s_add_u32 s72, s72, {WS_DBG + 8*MB + 4*idx}")
    a("v_mov_b32 v2, s72")
    a("s_mov_b32 s76, s68")
    a("s_mov_b32 s77, s69")
    a(f"s_mov_b32 s78, {WS_SIZE}")
    a("s_mov_b32 s79, 0x00020000")
    a("buffer_store_dword v1, v2, s[76:79], 0 offen")


def gen_worker(a):
    LDSBASE[0] = True
    a("v_lshrrev_b32 v1, 8, v0")
    a("s_nop 1")
    a("v_readfirstlane_b32 s57, v1")
    a("v_and_b32 v0, 0xff, v0")
    a("s_sub_u32 s60, s2, 128")
    a("s_lshl_b32 s60, s60, 1")
    a("s_add_u32 s60, s60, s57")
    a(f"s_mul_i32 s57, s57, {2*LDS_STAGE}")
    load_ptrs1(a)
    a(f"s_load_dwordx4 s[64:67], s[0:1], {KA['w2']}")
    a(f"s_load_dwordx2 s[68:69], s[0:1], {KA['ws']}")
    a("s_mov_b32 s61, s60")
    a("s_waitcnt lgkmcnt(0)")
    wstamp(a, 0)
    a("s_and_b32 s59, s60, 1")
    a("s_lshr_b32 s61, s60, 1")
    a("wk_kv:")
    a("s_cmp_ge_u32 s61, 1024")
    a("s_cbranch_scc1 wk_kv_end")
    a("s_lshr_b32 s3, s61, 6")
    a("s_and_b32 s4, s61, 63")
    a("s_add_u32 s4, s4, 32")
    tile1(a, "wkv_", "kv", kvflag="sc1", ksplit=True)
    a("s_lshl_b32 s7, s3, 2")
    a("s_waitcnt vmcnt(0)")
    a("s_barrier")
    a("s_cmp_lg_u32 s59, 0")
    a("s_cbranch_scc1 wk_kv_ns")
    a("v_mov_b32 v1, 1")
    a(f"s_add_u32 s5, s7, {WS_CNT}")
    a("v_mov_b32 v2, s5")
    a("v_cmp_eq_u32 vcc, 0, v0")
    a("s_and_saveexec_b64 s[46:47], vcc")
    a("buffer_atomic_add v1, v2, s[8:11], 0 offen sc1")
    a("s_mov_b64 exec, s[46:47]")
    a("wk_kv_ns:")
    a("s_barrier")
    a("s_add_u32 s61, s61, 128")
    a("s_branch wk_kv")
    a("wk_kv_end:")
    wstamp(a, 1)
    a("s_mov_b32 s61, s60")
    a("wk_loop:")
    a("s_cmp_ge_u32 s61, 960")
    a("s_cbranch_scc1 wk_mlp2")
    a("s_and_b32 s3, s61, 15")
    a("s_lshr_b32 s4, s61, 4")
    a("s_add_u32 s5, s4, 96")
    a("s_sub_u32 s6, s4, 28")
    a("s_cmp_lt_u32 s4, 28")
    a("s_cselect_b32 s4, s5, s6")
    tile1(a, "wk_", "qm", hflag="sc1", kvflag="sc1")
    a("s_lshl_b32 s7, s3, 2")
    a(f"s_add_u32 s6, s7, {C_M}")
    a(f"s_add_u32 s7, s7, {C_Q}")
    a("s_cmp_lt_u32 s61, 448")
    a("s_cselect_b32 s7, s6, s7")
    signal(a, 7)
    a("s_barrier")
    a("s_add_u32 s61, s61, 256")
    a("s_branch wk_loop")
    a("wk_mlp2:")
    wstamp(a, 2)
    a("s_cmp_ge_u32 s60, 128")
    a("s_cbranch_scc1 wk_attn")
    a("s_and_b32 s3, s60, 15")
    a("s_lshr_b32 s4, s60, 4")
    srd(a, 8, 28, 29, WS_SIZE)
    a("s_lshl_b32 s7, s3, 2")
    a(f"s_add_u32 s7, s7, {C_M}")
    wait_cnt(a, 7, 28)
    a("s_barrier")
    a(f"s_mov_b32 s40, {LDS_A}")
    srd(a, 12, 64, 65, 3584 * 1024 * 2)
    gemm_setup_addrs(a)
    a("v_lshrrev_b32 v1, 3, v0")
    a("s_lshl_b32 s34, s3, 7")
    a("v_add_u32 v1, s34, v1")
    a("s_mov_b32 s34, 7168")
    a("v_mul_lo_u32 v10, v1, s34")
    a("v_and_b32 v1, 7, v0")
    a("v_lshlrev_b32 v1, 4, v1")
    a("v_add_u32 v10, v10, v1")
    a("v_lshrrev_b32 v1, 4, v0")
    a("v_lshlrev_b32 v11, 11, v1")
    a("v_and_b32 v1, 15, v0")
    a("v_lshlrev_b32 v1, 4, v1")
    a("s_lshl_b32 s34, s4, 8")
    a("v_add3_u32 v11, v11, v1, s34")
    for i in range(4):
        a(f"s_mov_b32 s{48+i}, {WS_H + i*32*7168}")
        a(f"s_mov_b32 s{52+i}, {16*i*2048}")
    a(f"s_mov_b32 s35, {64*2048}")
    gemm_zero_acc(a)
    AFLAG[0] = "sc1"
    gemm_mainloop(a, 56, True, 48, 52, 128, 35, 36)
    AFLAG[0] = ""
    a("s_nop 7")
    a("s_nop 7")
    srd(a, 40, 66, 67, 2048)
    a("v_lshrrev_b32 v1, 1, v7")
    a("v_lshlrev_b32 v1, 6, v1")
    a("v_and_b32 v8, 31, v6")
    a("s_lshl_b32 s34, s3, 7")
    a("v_add3_u32 v1, v1, v8, s34")
    a("v_lshlrev_b32 v12, 11, v1")
    a("v_and_b32 v1, 1, v7")
    a("v_lshlrev_b32 v1, 7, v1")
    a("v_lshrrev_b32 v8, 5, v6")
    a("v_lshlrev_b32 v8, 3, v8")
    a("s_lshl_b32 s34, s4, 8")
    a("v_add3_u32 v14, v1, v8, s34")
    a("v_add_u32 v12, v12, v14")
    a(f"v_add_u32 v13, {32*2048}, v12")
    a(f"s_mov_b32 s36, {WS_BP}")
    for ni in range(2):
        for rg in range(4):
            t = 16 + 2 * (ni * 4 + rg)
            a(f"buffer_load_dwordx2 v[{t}:{t+1}], v14, s[40:43], 0 offen offset:{ni*64+rg*16}")
    a("s_waitcnt vmcnt(0)")
    for mi in range(2):
        for ni in range(2):
            for rg in range(4):
                acc = V_ACC + 16 * (2 * mi + ni) + 4 * rg
                bt = 16 + 2 * (ni * 4 + rg)
                for i in range(4):
                    bf16_round(a, acc + i, acc + i)
                    if i % 2 == 0:
                        a(f"v_lshlrev_b32 v32, 16, v{bt + i//2}")
                    else:
                        a(f"v_and_b32 v32, 0xffff0000, v{bt + i//2}")
                    a(f"v_add_f32 v{acc+i}, v{acc+i}, v32")
                a(f"v_cvt_pk_bf16_f32 v36, v{acc}, v{acc+1}")
                a(f"v_cvt_pk_bf16_f32 v37, v{acc+2}, v{acc+3}")
                a(f"buffer_store_dwordx2 v[36:37], v{12+mi}, s[8:11], s36 offen offset:{ni*64+rg*16} sc1")
                a("s_nop 1")
    a("s_lshl_b32 s7, s3, 2")
    a(f"s_add_u32 s7, s7, {C_B}")
    signal(a, 7)
    a("wk_attn:")
    wstamp(a, 3)
    a("s_and_b32 s59, s60, 1")
    a("s_mov_b32 s73, 0")
    a("wk_p4:")
    a(f"s_load_dwordx2 s[28:29], s[0:1], {KA['ws']}")
    a("s_waitcnt lgkmcnt(0)")
    srd(a, 8, 28, 29, WS_SIZE)
    a("s_mov_b32 s74, s73")
    a("s_cmp_ge_u32 s60, 128")
    a("s_cbranch_scc1 wk_p4k")
    a("s_cmp_eq_u32 s73, 2")
    a("s_cbranch_scc1 wk_p4k")
    a("s_xor_b32 s74, s73, 1")
    a("wk_p4k:")
    a("s_cmp_eq_u32 s74, 1")
    a("s_cbranch_scc0 wk_tile")
    a("s_lshr_b32 s16, s60, 2")
    a("s_lshr_b32 s7, s16, 2")
    a("s_lshl_b32 s7, s7, 2")
    a(f"s_add_u32 s7, s7, {C_Q}")
    wait_cnt(a, 7, 32)
    a("s_mov_b32 s58, 0")
    a("wk_at_loop:")
    a("s_lshr_b32 s16, s60, 2")
    a("s_and_b32 s17, s60, 3")
    a("s_lshl_b32 s17, s17, 3")
    a("s_add_u32 s17, s17, s58")
    AT.attn_body(a, "wka_")
    a("s_add_u32 s58, s58, 4")
    a("s_cmp_lt_u32 s58, 8")
    a("s_cbranch_scc1 wk_at_loop")
    a("s_lshr_b32 s7, s60, 3")
    a("s_lshl_b32 s7, s7, 2")
    a(f"s_add_u32 s7, s7, {C_O}")
    signal(a, 7)
    wstamp(a, 4)
    a("s_branch wk_p4n")
    a("wk_tile:")
    a("s_lshr_b32 s3, s60, 4")
    a("s_lshl_b32 s4, s74, 3")
    a("s_add_u32 s3, s3, s4")
    a("s_lshr_b32 s4, s60, 1")
    a("s_and_b32 s4, s4, 7")
    a("s_lshl_b32 s7, s3, 2")
    a(f"s_add_u32 s7, s7, {C_O}")
    wait_cnt(a, 7, 8)
    a("s_lshr_b32 s7, s3, 1")
    a("s_lshl_b32 s7, s7, 2")
    a(f"s_add_u32 s7, s7, {C_B}")
    wait_cnt(a, 7, 8)
    a("s_barrier")
    wstamp(a, 5)
    G2.outproj_body(a)
    wstamp(a, 6)
    a("wk_p4n:")
    a("s_add_u32 s73, s73, 1")
    a("s_cmp_lt_u32 s73, 3")
    a("s_cbranch_scc1 wk_p4")
    LDSBASE[0] = False
    a("s_branch rec_done")
```

```python
import sys
from gen_common import *
from gemm import *
from rec import *

def gen_ln(a):
    name = "ln_kernel"
    kernel_header(a, name)
    a("s_cmp_ge_u32 s2, 512")
    a("s_cbranch_scc1 ln_done")
    a(f"s_load_dwordx2 s[4:5], s[0:1], {KA['x']}")
    a(f"s_load_dwordx2 s[6:7], s[0:1], {KA['ws']}")
    a("s_waitcnt lgkmcnt(0)")
    srd(a, 8, 4, 5, 4 * MB)
    srd(a, 12, 6, 7, WS_SIZE)
    a("v_lshrrev_b32 v1, 6, v0")
    a("v_and_b32 v2, 63, v0")
    a("s_lshl_b32 s3, s2, 2")
    a("v_add_u32 v1, s3, v1")
    a("v_lshlrev_b32 v1, 11, v1")
    a("v_lshlrev_b32 v3, 4, v2")
    a("v_add_u32 v1, v1, v3")
    a("buffer_load_dwordx4 v[4:7], v1, s[8:11], 0 offen")
    a("buffer_load_dwordx4 v[8:11], v1, s[8:11], 0 offen offset:1024")
    a("v_mov_b32 v40, -1")
    a("v_mov_b32 v41, -1")
    a("v_mov_b32 v42, -1")
    a("v_mov_b32 v43, -1")
    a("s_lshl_b32 s3, s2, 15")
    a(f"s_add_u32 s3, s3, {WS_SYNC}")
    a("v_lshlrev_b32 v44, 4, v0")
    for i in range(8):
        a(f"buffer_store_dwordx4 v[40:43], v44, s[12:15], s3 offen")
        a("s_add_u32 s3, s3, 4096")
    a("s_cmp_lg_u32 s2, 0")
    a("s_cbranch_scc1 ln_nocnt")
    a("v_mov_b32 v45, 0")
    a("v_lshlrev_b32 v46, 2, v0")
    a(f"s_mov_b32 s3, {WS_CNT}")
    a("buffer_store_dword v45, v46, s[12:15], s3 offen")
    a("ln_nocnt:")
    a("s_waitcnt vmcnt(8)")
    for i in range(8):
        a(f"v_lshlrev_b32 v{12+2*i}, 16, v{4+i}")
        a(f"v_and_b32 v{13+2*i}, 0xffff0000, v{4+i}")
    for rep, dst in ((0, WS_XN), (1, WS_Y)):
        a("v_add_f32 v28, v12, v13")
        for i in range(2, 16):
            a(f"v_add_f32 v28, v28, v{12+i}")
        wave_sum(a, 28, 29, 16)
        a("v_mov_b32 v28, 0x3a800000")
        a("v_mul_f32 v30, s16, v28")
        a("v_sub_f32 v29, v12, v30")
        a("v_mul_f32 v28, v29, v29")
        for i in range(1, 16):
            a(f"v_sub_f32 v29, v{12+i}, v30")
            a("v_fmac_f32 v28, v29, v29")
        wave_sum(a, 28, 29, 17)
        a("v_mov_b32 v28, 0x3a800000")
        a("v_mul_f32 v31, s17, v28")
        bf16_round(a, 30, 30)
        bf16_round(a, 31, 31)
        a("v_add_f32 v31, 0x3727c5ac, v31")
        bf16_round(a, 31, 31)
        a("v_sqrt_f32 v31, v31")
        a("s_nop 0")
        bf16_round(a, 31, 31)
        a("v_rcp_f32 v31, v31")
        a("s_nop 0")
        for i in range(16):
            a(f"v_sub_f32 v29, v{12+i}, v30")
            bf16_round(a, 29, 29)
            a(f"v_mul_f32 v{12+i}, v29, v31")
        for i in range(8):
            a(f"v_cvt_pk_bf16_f32 v{4+i}, v{12+2*i}, v{13+2*i}")
        a(f"s_mov_b32 s3, {dst}")
        a("buffer_store_dwordx4 v[4:7], v1, s[12:15], s3 offen")
        a("buffer_store_dwordx4 v[8:11], v1, s[12:15], s3 offen offset:1024")
        if rep == 0:
            for i in range(8):
                a(f"v_lshlrev_b32 v{12+2*i}, 16, v{4+i}")
                a(f"v_and_b32 v{13+2*i}, 0xffff0000, v{4+i}")
    a("ln_done:")
    a("s_endpgm")
    return kernel_desc(name, 48, 24)


def main():
    import rec, os
    rec.STAMP = bool(os.environ.get('STAMP'))
    rec.SLEEP = int(os.environ.get('SLEEP', '0'))
    a = Asm()
    descs = []
    launches = []
    body = Asm()
    descs.append(gen_ln(body))
    launches.append("; @launch kernel=ln_kernel grid=(512,1,1) block=(256,1,1) lds=0")
    descs.append(gen_rec(body))
    launches.append(f"; @launch kernel=rec_kernel grid=(256,1,1) block=(512,1,1) lds={REC_LDS}")
    out = []
    out += launches
    out.append('.amdgcn_target "amdgcn-amd-amdhsa--gfx950"')
    out.append(".text")
    out.append(body.text())
    out.append('.section .rodata,"a"')
    for d in descs:
        out.append(".p2align 6")
        out.append(d)
    open(sys.argv[1], "w").write("\n".join(out))


if __name__ == "__main__":
    main()
```

```python
from gen_common import *

L_KX = 0
L_VTX = 8704
L_Q = 17920
L_KM = 20096
L_VTM = 22272
L_OX = 24320
L_RED = 28416
L_END = L_RED + 49152
REC_LDS = 2 * 77824

V_W1 = 128
V_W2 = 224
SPIN_MAX = 1 << 21
SCALE_BITS = 0x3db504f3
LOG2E = 0x3fb8aa3b
STAMP = False
SLEEP = 0


def stamp(a, idx):
    if not STAMP:
        return
    a(f"s_memtime s[{50+2*idx}:{51+2*idx}]")


def any_sentinel(a, regs, vt):
    regs = list(regs)
    a(f"v_max_u32 v{vt}, v{regs[0]}, v{regs[1]}")
    i = 2
    while i < len(regs):
        if i + 1 < len(regs):
            a(f"v_max3_u32 v{vt}, v{vt}, v{regs[i]}, v{regs[i+1]}")
            i += 2
        else:
            a(f"v_max_u32 v{vt}, v{vt}, v{regs[i]}")
            i += 1
    a(f"v_cmp_eq_u32 vcc, -1, v{vt}")


def poll_tail(a, top, done):
    a("s_cbranch_vccz " + done)
    a("s_add_u32 s19, s19, 1")
    if SLEEP:
        a(f"s_sleep {SLEEP}")
    a(f"s_cmp_lt_u32 s19, s20")
    a("s_cbranch_scc1 " + top)
    a("s_mov_b32 s20, 0")
    a(f"{done}:")


def canon(a, v):
    a(f"v_cmp_eq_u32 vcc, -1, v{v}")
    a("s_nop 1")
    a(f"v_cndmask_b32 v{v}, v{v}, v25, vcc")


def xlane_reduce(a, op, v, t):
    a(f"v_mov_b32 v{t}, v{v}")
    a("s_nop 1")
    a(f"v_permlane16_swap_b32 v{v}, v{t}")
    a(f"{op} v{v}, v{v}, v{t}")
    a(f"v_mov_b32 v{t}, v{v}")
    a("s_nop 1")
    a(f"v_permlane32_swap_b32 v{v}, v{t}")
    a(f"{op} v{v}, v{v}, v{t}")


def gen_rec(a):
    name = "rec_kernel"
    kernel_header(a, name)
    a("s_cmp_ge_u32 s2, 256")
    a("s_cbranch_scc1 rec_done")
    a("s_cmp_ge_u32 s2, 128")
    a("s_cbranch_scc1 rec_worker")
    a(f"s_load_dwordx2 s[4:5], s[0:1], {KA['ws']}")
    a(f"s_load_dwordx2 s[6:7], s[0:1], {KA['mem0']}")
    a(f"s_load_dwordx4 s[24:27], s[0:1], {KA['Wq']}")
    a(f"s_load_dwordx4 s[28:31], s[0:1], {KA['Wv']}")
    a("s_and_b32 s16, s2, 7")
    a("s_lshl_b32 s16, s16, 2")
    a("s_lshr_b32 s17, s2, 5")
    a("s_add_u32 s16, s16, s17")
    a("s_bfe_u32 s17, s2, 0x20003")
    a(f"s_mov_b32 s20, {SPIN_MAX}")
    a("v_and_b32 v1, 63, v0")
    a("v_lshrrev_b32 v2, 6, v0")
    a("v_and_b32 v3, 15, v1")
    a("v_lshrrev_b32 v4, 4, v1")
    a("s_waitcnt lgkmcnt(0)")
    srd(a, 8, 4, 5, WS_SIZE)
    a("s_getreg_b32 s21, hwreg(HW_REG_XCC_ID)")
    a("s_and_b32 s21, s21, 15")
    a("v_mov_b32 v5, s21")
    a("s_lshl_b32 s22, s16, 4")
    a("s_lshl_b32 s23, s17, 2")
    a("s_add_u32 s23, s23, s22")
    a(f"s_add_u32 s23, s23, {WS_XID}")
    a("v_mov_b32 v6, s23")
    a("buffer_store_dword v5, v6, s[8:11], 0 offen sc1")
    a(f"s_add_u32 s22, s22, {WS_XID}")
    a("v_mov_b32 v6, s22")
    a("s_mov_b32 s19, 0")
    a("rec_xw:")
    a("buffer_load_dwordx4 v[8:11], v6, s[8:11], 0 offen sc1")
    a("s_waitcnt vmcnt(0)")
    any_sentinel(a, range(8, 12), 7)
    poll_tail(a, "rec_xw", "rec_xd")
    a("v_xor_b32 v9, v8, v9")
    a("v_xor_b32 v10, v8, v10")
    a("v_xor_b32 v11, v8, v11")
    a("v_or3_b32 v9, v9, v10, v11")
    a("s_nop 1")
    a("v_readfirstlane_b32 s34, v9")
    a("v_lshlrev_b32 v5, 7, v2")
    a("v_lshrrev_b32 v6, 2, v1")
    a("v_add_u32 v5, v5, v6")
    a("v_lshlrev_b32 v5, 13, v5")
    a("v_and_b32 v6, 3, v1")
    a("v_lshlrev_b32 v6, 4, v6")
    a("s_lshl_b32 s21, s16, 8")
    a("s_lshl_b32 s22, s17, 6")
    a("s_add_u32 s21, s21, s22")
    a("v_add3_u32 v5, v5, v6, s21")
    a("v_lshlrev_b32 v7, 13, v2")
    a("v_lshlrev_b32 v6, 4, v1")
    a("v_add_u32 v7, v7, v6")
    a("v_lshlrev_b32 v8, 3, v4")
    a("v_lshrrev_b32 v6, 2, v3")
    a("v_add_u32 v8, v8, v6")
    a("v_lshlrev_b32 v8, 6, v8")
    a("v_and_b32 v6, 3, v1")
    a("v_lshlrev_b32 v6, 3, v6")
    a("v_add_u32 v8, v8, v6")
    a("v_lshlrev_b32 v6, 13, v2")
    a("v_add_u32 v8, v8, v6")
    for mat, (lo, hi) in enumerate(((24, 25), (26, 27), (28, 29))):
        srd(a, 12, lo, hi, 8 * MB)
        for i in range(8):
            a(f"s_mov_b32 s21, {i*16*8192}")
            a(f"buffer_load_dwordx4 v[{32+4*i}:{35+4*i}], v5, s[12:15], s21 offen")
        a("s_waitcnt vmcnt(0)")
        for i in range(8):
            a(f"ds_write_b128 v7, v[{32+4*i}:{35+4*i}] offset:{i*1024}")
        a("s_waitcnt lgkmcnt(0)")
        for nt in range(2):
            for ks in range(4):
                for hf in range(2):
                    r = V_W1 + ((mat * 2 + nt) * 4 + ks) * 4 + 2 * hf
                    a(f"ds_read_b64_tr_b16 v[{r}:{r+1}], v8 offset:{(32*ks+4*hf)*64 + nt*32}")
        a("s_waitcnt lgkmcnt(0)")
    srd(a, 12, 30, 31, 8 * MB)
    a("v_lshrrev_b32 v5, 2, v1")
    a("s_lshl_b32 s21, s16, 7")
    a("v_add_u32 v5, s21, v5")
    a("v_lshlrev_b32 v5, 11, v5")
    a("v_and_b32 v6, 3, v1")
    a("v_lshlrev_b32 v6, 4, v6")
    a("v_lshlrev_b32 v9, 6, v2")
    a("s_lshl_b32 s21, s17, 9")
    a("v_add3_u32 v5, v5, v6, s21")
    a("v_add_u32 v5, v5, v9")
    for i in range(8):
        a(f"s_mov_b32 s21, {i*16*2048}")
        a(f"buffer_load_dwordx4 v[{32+4*i}:{35+4*i}], v5, s[12:15], s21 offen")
    a("s_waitcnt vmcnt(0)")
    for i in range(8):
        a(f"ds_write_b128 v7, v[{32+4*i}:{35+4*i}] offset:{i*1024}")
    a("v_lshlrev_b32 v8, 2, v4")
    a("v_lshrrev_b32 v6, 2, v3")
    a("v_add_u32 v8, v8, v6")
    a("v_lshlrev_b32 v8, 6, v8")
    a("v_and_b32 v6, 3, v1")
    a("v_lshlrev_b32 v6, 3, v6")
    a("v_add_u32 v8, v8, v6")
    a("v_lshlrev_b32 v6, 13, v2")
    a("v_add_u32 v8, v8, v6")
    a("s_waitcnt lgkmcnt(0)")
    for t in range(2):
        for s in range(4):
            for hf in range(2):
                r = V_W2 + (t * 4 + s) * 4 + 2 * hf
                a(f"ds_read_b64_tr_b16 v[{r}:{r+1}], v8 offset:{(32*s+16*hf)*64 + t*32}")
    a("s_waitcnt lgkmcnt(0)")
    a("s_barrier")
    a("v_lshlrev_b32 v5, 11, v3")
    a("v_lshlrev_b32 v6, 8, v2")
    a("v_lshlrev_b32 v7, 4, v4")
    a("v_add3_u32 v5, v5, v6, v7")
    a("v_lshlrev_b32 v28, 4, v2")
    a("v_add_u32 v28, v28, v4")
    a("v_lshlrev_b32 v28, 3, v28")
    a("v_add_u32 v28, v28, v3")
    a("v_lshlrev_b32 v28, 4, v28")
    a("v_lshrrev_b32 v6, 4, v0")
    a("v_lshlrev_b32 v6, 13, v6")
    a("v_and_b32 v7, 15, v0")
    a("v_lshlrev_b32 v7, 4, v7")
    a("s_lshl_b32 s21, s16, 8")
    a("v_add3_u32 v6, v6, v7, s21")
    a("v_lshrrev_b32 v7, 4, v0")
    a("v_mul_u32_u24 v7, 272, v7")
    a("v_and_b32 v8, 15, v0")
    a("v_lshlrev_b32 v8, 4, v8")
    a("v_add_u32 v7, v7, v8")
    a("v_lshlrev_b32 v8, 4, v0")
    a("s_lshl_b32 s21, s16, 13")
    a("v_add_u32 v8, s21, v8")
    a("v_lshrrev_b32 v9, 2, v0")
    a("v_mul_u32_u24 v9, 72, v9")
    a("v_and_b32 v10, 3, v0")
    a("v_lshlrev_b32 v10, 4, v10")
    a("v_add_u32 v9, v9, v10")
    a(f"v_add_u32 v9, {L_VTX}, v9")
    a("v_mul_u32_u24 v10, 384, v2")
    a("v_add_u32 v10, v10, v1")
    a("v_lshlrev_b32 v10, 4, v10")
    a(f"v_add_u32 v10, {L_RED}, v10")
    a("v_lshrrev_b32 v11, 7, v0")
    a("v_lshlrev_b32 v11, 1, v11")
    a("v_bfe_u32 v12, v0, 3, 1")
    a("v_add_u32 v11, v11, v12")
    a("v_lshlrev_b32 v11, 6, v11")
    a("v_bfe_u32 v12, v0, 1, 2")
    a("v_lshlrev_b32 v12, 4, v12")
    a("v_add_u32 v11, v11, v12")
    a("v_bfe_u32 v12, v0, 4, 3")
    a("v_add_u32 v11, v11, v12")
    a("v_lshlrev_b32 v11, 4, v11")
    a("v_and_b32 v12, 1, v0")
    a("v_lshlrev_b32 v12, 3, v12")
    a("v_add_u32 v11, v11, v12")
    a(f"v_add_u32 v11, {L_RED}, v11")
    a("v_add_u32 v12, 4, v11")
    a("v_subrev_u32 v14, 0x100, v0")
    a("v_bfe_u32 v15, v14, 7, 1")
    a("v_add_u32 v15, 4, v15")
    a("v_lshlrev_b32 v15, 6, v15")
    a("v_bfe_u32 v16, v14, 5, 2")
    a("v_lshlrev_b32 v16, 4, v16")
    a("v_add_u32 v15, v15, v16")
    a("v_and_b32 v16, 7, v14")
    a("v_add_u32 v15, v15, v16")
    a("v_lshlrev_b32 v15, 4, v15")
    a("v_bfe_u32 v16, v14, 3, 2")
    a("v_lshlrev_b32 v16, 2, v16")
    a("v_add_u32 v15, v15, v16")
    a(f"v_add_u32 v15, {L_RED}, v15")
    a("v_lshlrev_b32 v13, 2, v0")
    a("v_lshrrev_b32 v16, 1, v14")
    a("v_lshlrev_b32 v16, 2, v16")
    a("v_add_u32 v16, 0x400, v16")
    a("v_cmp_le_u32 vcc, 0x100, v0")
    a("s_nop 1")
    a("v_cndmask_b32 v11, v11, v15, vcc")
    a("v_cndmask_b32 v13, v13, v16, vcc")
    a("s_mul_i32 s21, s17, 1536")
    a("v_add_u32 v13, s21, v13")
    a("v_lshlrev_b32 v14, 4, v0")
    a("v_mul_u32_u24 v18, 683, v0")
    a("v_lshrrev_b32 v18, 16, v18")
    a("v_mul_u32_u24 v19, 96, v18")
    a("v_sub_u32 v19, v0, v19")
    a("v_lshrrev_b32 v20, 5, v19")
    a("v_and_b32 v21, 31, v19")
    a("v_lshlrev_b32 v22, 3, v20")
    a("v_lshrrev_b32 v23, 2, v21")
    a("v_add_u32 v22, v22, v23")
    a("v_mul_u32_u24 v22, 272, v22")
    a("v_lshlrev_b32 v23, 6, v18")
    a("v_add_u32 v22, v22, v23")
    a("v_and_b32 v23, 3, v21")
    a("v_lshlrev_b32 v23, 4, v23")
    a("v_add_u32 v22, v22, v23")
    a(f"v_add_u32 v22, {L_Q}, v22")
    a("v_lshlrev_b32 v23, 5, v18")
    a("v_add_u32 v23, v23, v21")
    a("v_lshlrev_b32 v23, 4, v23")
    a(f"v_add_u32 v23, {L_VTM}, v23")
    a("v_cmp_eq_u32 vcc, 2, v20")
    a("s_nop 1")
    a("v_cndmask_b32 v15, v22, v23, vcc")
    a("v_mul_u32_u24 v17, 272, v3")
    a("v_lshlrev_b32 v18, 4, v4")
    a("v_add_u32 v17, v17, v18")
    a("v_lshlrev_b32 v18, 4, v2")
    a("v_add_u32 v18, v18, v3")
    a("v_lshlrev_b32 v19, 4, v18")
    a("v_mul_u32_u24 v18, 72, v18")
    a("v_lshlrev_b32 v20, 3, v4")
    a("v_add_u32 v18, v18, v20")
    a(f"v_add_u32 v18, {L_VTX}, v18")
    a("v_and_b32 v20, 1, v4")
    a("v_lshlrev_b32 v20, 3, v20")
    a("v_add_u32 v19, v19, v20")
    a(f"v_add_u32 v19, {L_VTM}, v19")
    a("v_lshlrev_b32 v16, 3, v0")
    a(f"v_add_u32 v16, {L_OX}, v16")
    a("v_lshlrev_b32 v20, 3, v1")
    a(f"v_add_u32 v20, {L_OX}, v20")
    a("v_lshlrev_b32 v22, 3, v2")
    a("v_add_u32 v22, v22, v4")
    a("v_lshlrev_b32 v22, 3, v22")
    a("v_add_u32 v22, v22, v3")
    a("v_lshlrev_b32 v22, 4, v22")
    a("s_lshl_b32 s21, s17, 5")
    a("s_add_u32 s21, s21, s16")
    a("s_lshl_b32 s21, s21, 13")
    a("v_add_u32 v22, s21, v22")
    a("v_lshlrev_b32 v23, 13, v4")
    a("v_lshlrev_b32 v24, 4, v3")
    a("s_lshl_b32 s21, s17, 18")
    a("s_lshl_b32 s22, s16, 8")
    a("s_add_u32 s21, s21, s22")
    a("v_add3_u32 v23, v23, v24, s21")
    a("v_and_b32 v24, 7, v1")
    a("v_lshlrev_b32 v24, 4, v24")
    a("v_bfe_u32 v25, v1, 3, 1")
    a("v_lshlrev_b32 v25, 3, v25")
    a("s_lshl_b32 s21, s17, 12")
    a("s_lshl_b32 s22, s16, 7")
    a("s_add_u32 s21, s21, s22")
    a("v_add3_u32 v24, v24, v25, s21")
    a("v_mov_b32 v26, -1")
    a("v_mov_b32 v25, 0x7fc07fc0")
    a("s_mov_b32 s18, 0")
    srd(a, 12, 6, 7, 16384)
    a("v_cmp_gt_u32 vcc, 8, v3")
    a("s_and_saveexec_b64 s[32:33], vcc")
    for ks in range(4):
        a(f"buffer_load_dwordx4 v[{32+4*ks}:{35+4*ks}], v5, s[12:15], 0 offen offset:{ks*64}")
    a("s_mov_b64 exec, s[32:33]")
    a("rec_step:")
    stamp(a, 0)
    a("s_and_b32 s21, s18, 3")
    a("s_cmp_lg_u32 s21, 0")
    a("s_cbranch_scc1 rec_kvok")
    a(f"s_add_u32 s21, s18, {WS_CNT}")
    a("v_mov_b32 v27, s21")
    a("s_mov_b32 s19, 0")
    a("rec_kvw:")
    a("buffer_load_dword v29, v27, s[8:11], 0 offen sc1")
    a("s_waitcnt vmcnt(0)")
    a("v_cmp_gt_u32 vcc, 64, v29")
    a("s_cbranch_vccz rec_kvok")
    a("s_sleep 32")
    a("s_add_u32 s19, s19, 1")
    a("s_cmp_lt_u32 s19, 0x80000")
    a("s_cbranch_scc1 rec_kvw")
    a("rec_kvok:")
    a("s_lshl_b32 s21, s18, 18")
    a(f"s_add_u32 s21, s21, {WS_K}")
    a("buffer_load_dwordx4 v[112:115], v6, s[8:11], s21 offen sc1")
    a("s_lshl_b32 s21, s18, 18")
    a(f"s_add_u32 s21, s21, {WS_VT}")
    a("buffer_load_dwordx4 v[120:123], v8, s[8:11], s21 offen sc1")
    a("s_cmp_eq_u32 s18, 0")
    a("s_cbranch_scc1 rec_p1s")
    a("s_lshl_b32 s21, s18, 14")
    a(f"s_add_u32 s21, s21, {WS_MEM}")
    a("s_mov_b32 s19, 0")
    a("v_cmp_gt_u32 vcc, 8, v3")
    a("s_and_saveexec_b64 s[32:33], vcc")
    a("rec_p1:")
    for ks in range(4):
        a(f"buffer_load_dwordx4 v[{32+4*ks}:{35+4*ks}], v28, s[8:11], s21 offen offset:{ks*512} sc1")
    a("s_waitcnt vmcnt(0)")
    any_sentinel(a, range(32, 48), 27)
    poll_tail(a, "rec_p1", "rec_p1d")
    a("s_mov_b64 exec, s[32:33]")
    a("rec_p1s:")
    a("s_waitcnt vmcnt(0)")
    stamp(a, 1)
    for ks in range(4):
        for tl in range(6):
            w = V_W1 + (tl * 4 + ks) * 4
            c = "0" if ks == 0 else f"v[{64+4*tl}:{67+4*tl}]"
            a(f"v_mfma_f32_16x16x32_bf16 v[{64+4*tl}:{67+4*tl}], v[{w}:{w+3}], v[{32+4*ks}:{35+4*ks}], {c}")
    a("ds_write_b128 v7, v[112:115]")
    a("ds_write_b128 v9, v[120:123]")
    a("s_nop 7")
    for tl in range(6):
        a(f"ds_write_b128 v10, v[{64+4*tl}:{67+4*tl}] offset:{tl*1024}")
    a("s_waitcnt lgkmcnt(0)")
    a("s_barrier")
    stamp(a, 2)
    for ks in range(4):
        a(f"ds_read_b128 v[{48+4*ks}:{51+4*ks}], v17 offset:{L_KX + ks*64}")
        a(f"ds_read_b128 v[{64+4*ks}:{67+4*ks}], v17 offset:{L_KX + 16*272 + ks*64}")
    a(f"ds_read_b64 v[112:113], v18")
    a(f"ds_read_b64 v[114:115], v18 offset:32")
    a("s_mul_i32 s21, s18, 196608")
    a("s_mul_i32 s22, s16, 6144")
    a("s_add_u32 s21, s21, s22")
    a(f"s_add_u32 s35, s21, {WS_FQ}")
    a(f"s_add_u32 s21, s21, {WS_QKVM}")
    a("v_readfirstlane_b32 s22, v2")
    a("s_cmp_ge_u32 s22, 4")
    a("s_cbranch_scc1 rec_pubv")
    for wv in range(8):
        a(f"ds_read_b64 v[{32+2*wv}:{33+2*wv}], v11 offset:{wv*6144}")
    a("s_waitcnt lgkmcnt(0)")
    for st in (2, 4, 8):
        for b in range(0, 16, 2 * st):
            a(f"v_add_f32 v{32+b}, v{32+b}, v{32+b+st}")
            a(f"v_add_f32 v{33+b}, v{33+b}, v{33+b+st}")
    a("v_cvt_pk_bf16_f32 v32, v32, v33")
    canon(a, 32)
    a("buffer_store_dword v32, v13, s[8:11], s35 offen")
    a("buffer_store_dword v32, v13, s[8:11], s21 offen sc1")
    a("s_branch rec_pubd")
    a("rec_pubv:")
    for wv in range(8):
        a(f"ds_read_b32 v{32+wv}, v11 offset:{wv*6144}")
    a("s_waitcnt lgkmcnt(0)")
    for st in (1, 2, 4):
        for b in range(0, 8, 2 * st):
            a(f"v_add_f32 v{32+b}, v{32+b}, v{32+b+st}")
    a("s_nop 1")
    a("v_mov_b32_dpp v33, v32 quad_perm:[1,0,3,2] row_mask:0xf bank_mask:0xf")
    a("v_cvt_pk_bf16_f32 v32, v32, v33")
    canon(a, 32)
    a("v_and_b32 v33, 1, v1")
    a("v_cmp_eq_u32 vcc, 0, v33")
    a("s_and_saveexec_b64 s[32:33], vcc")
    a("buffer_store_dword v32, v13, s[8:11], s35 offen")
    a("buffer_store_dword v32, v13, s[8:11], s21 offen sc1")
    a("s_mov_b64 exec, s[32:33]")
    a("rec_pubd:")
    a("s_cmp_eq_u32 s34, 0")
    a("s_cselect_b32 s21, s35, s21")
    a("v_cmp_gt_u32 vcc, 0x180, v0")
    a("s_and_saveexec_b64 s[32:33], vcc")
    a("s_cbranch_execz rec_skip_pub")
    stamp(a, 3)
    a("s_mov_b32 s19, 0")
    a("rec_p2:")
    a("buffer_load_dwordx4 v[32:35], v14, s[8:11], s21 offen sc1")
    a("s_waitcnt vmcnt(0)")
    any_sentinel(a, range(32, 36), 27)
    poll_tail(a, "rec_p2", "rec_p2d")
    a("ds_write_b128 v15, v[32:35]")
    a("rec_skip_pub:")
    a("s_mov_b64 exec, s[32:33]")
    a("s_waitcnt lgkmcnt(0)")
    a("s_barrier")
    stamp(a, 4)
    for ks in range(4):
        a(f"ds_read_b128 v[{32+4*ks}:{35+4*ks}], v17 offset:{L_Q + ks*64}")
        a(f"ds_read_b128 v[{80+4*ks}:{83+4*ks}], v17 offset:{L_KM + ks*64}")
    a(f"ds_read_b64 v[116:117], v19")
    a(f"s_mov_b32 s21, {SCALE_BITS}")
    a(f"s_mov_b32 s22, {LOG2E}")
    for ks in range(4):
        a(f"s_waitcnt lgkmcnt({7-2*ks})")
        for t in range(3):
            c = "0" if ks == 0 else f"v[{96+4*t}:{99+4*t}]"
            a(f"v_mfma_f32_16x16x32_bf16 v[{96+4*t}:{99+4*t}], v[{48+16*t+4*ks}:{51+16*t+4*ks}], v[{32+4*ks}:{35+4*ks}], {c}")
    a("v_cmp_gt_u32 vcc, 2, v4")
    a("v_mov_b32 v27, 0xff800000")
    a("s_nop 7")
    for i in range(6):
        a(f"v_cvt_pk_bf16_f32 v{80+i}, v{96+2*i}, v{97+2*i}")
    for i in range(6):
        a(f"v_lshlrev_b32 v{96+2*i}, 16, v{80+i}")
        a(f"v_and_b32 v{97+2*i}, 0xffff0000, v{80+i}")
    for i in range(12):
        a(f"v_mul_f32 v{96+i}, s21, v{96+i}")
    for i in range(6):
        a(f"v_cvt_pk_bf16_f32 v{80+i}, v{96+2*i}, v{97+2*i}")
    for i in range(6):
        a(f"v_lshlrev_b32 v{96+2*i}, 16, v{80+i}")
        a(f"v_and_b32 v{97+2*i}, 0xffff0000, v{80+i}")
    for i in range(4):
        a(f"v_cndmask_b32 v{104+i}, v27, v{104+i}, vcc")
    a("v_max3_f32 v27, v96, v97, v98")
    a("v_max3_f32 v29, v99, v100, v101")
    a("v_max3_f32 v27, v27, v102, v103")
    a("v_max3_f32 v29, v29, v104, v105")
    a("v_max3_f32 v27, v27, v106, v107")
    a("v_max_f32 v27, v27, v29")
    xlane_reduce(a, "v_max_f32", 27, 29)
    a("v_mul_f32 v27, s22, v27")
    for i in range(12):
        a(f"v_fma_f32 v{96+i}, v{96+i}, s22, -v27")
    for i in range(12):
        a(f"v_exp_f32 v{96+i}, v{96+i}")
    a("s_nop 0")
    a("v_add_f32 v27, v96, v97")
    a("v_add_f32 v29, v98, v99")
    for i in range(4, 12, 2):
        a(f"v_add_f32 v27, v27, v{96+i}")
        a(f"v_add_f32 v29, v29, v{97+i}")
    a("v_add_f32 v27, v27, v29")
    xlane_reduce(a, "v_add_f32", 27, 29)
    a("v_rcp_f32 v27, v27")
    a("s_nop 0")
    for i in range(12):
        a(f"v_mul_f32 v{96+i}, v{96+i}, v27")
    for i in range(6):
        a(f"v_cvt_pk_bf16_f32 v{106+i}, v{96+2*i}, v{97+2*i}") if False else None
    for i in range(6):
        a(f"v_cvt_pk_bf16_f32 v{120+i}, v{96+2*i}, v{97+2*i}")
    a("s_waitcnt lgkmcnt(0)")
    a("s_nop 0")
    a("v_mfma_f32_16x16x32_bf16 v[96:99], v[112:115], v[120:123], 0")
    a("v_mfma_f32_16x16x16_bf16 v[104:107], v[116:117], v[124:125], 0")
    a("s_nop 7")
    a("s_nop 1")
    for i in range(4):
        a(f"v_add_f32 v{96+i}, v{96+i}, v{104+i}")
    a("v_cvt_pk_bf16_f32 v100, v96, v97")
    a("v_cvt_pk_bf16_f32 v101, v98, v99")
    a("ds_write_b64 v16, v[100:101]")
    if STAMP:
        a("s_cmp_lg_u32 s18, 0")
        a("s_cbranch_scc1 rec_nodbg")
        a("v_lshlrev_b32 v102, 3, v0")
        a("s_lshl_b32 s23, s2, 12")
        a(f"s_add_u32 s23, s23, {WS_DBG + 4*MB}")
        a("buffer_store_dwordx2 v[100:101], v102, s[8:11], s23 offen")
        a("rec_nodbg:")
    a("s_waitcnt lgkmcnt(0)")
    a("s_barrier")
    stamp(a, 5)
    a("s_cmp_eq_u32 s18, 63")
    a("s_cbranch_scc1 rec_done")
    for et in range(8):
        a(f"ds_read_b64 v[{40+2*et}:{41+2*et}], v20 offset:{et*512}")
    a("s_and_b32 s21, s18, 1")
    a("s_lshl_b32 s21, s21, 20")
    a(f"s_add_u32 s21, s21, {WS_PART}")
    for s in range(4):
        a(f"s_waitcnt lgkmcnt({6-2*s})")
        for t in range(2):
            w = V_W2 + (t * 4 + s) * 4
            c = "0" if s == 0 else f"v[{56+4*t}:{59+4*t}]"
            a(f"v_mfma_f32_16x16x32_bf16 v[{56+4*t}:{59+4*t}], v[{w}:{w+3}], v[{40+4*s}:{43+4*s}], {c}")
    a("s_nop 7")
    a("s_nop 1")
    for i in range(8):
        a(f"v_cmp_eq_u32 vcc, -1, v{56+i}")
        a("s_nop 1")
        a(f"v_cndmask_b32 v{56+i}, v{56+i}, v25, vcc")
    a("v_cmp_gt_u32 vcc, 8, v3")
    a("s_and_saveexec_b64 s[32:33], vcc")
    a("buffer_store_dwordx4 v[56:59], v22, s[8:11], s21 offen sc1")
    a("buffer_store_dwordx4 v[60:63], v22, s[8:11], s21 offen offset:512 sc1")
    a("s_mov_b64 exec, s[32:33]")
    stamp(a, 6)
    a("v_readfirstlane_b32 s22, v2")
    a("s_cmp_lg_u32 s22, 0")
    a("s_cbranch_scc1 rec_next")
    a("s_mov_b32 s19, 0")
    a("rec_p3:")
    a("s_mov_b32 s22, s21")
    for i in range(8):
        a(f"buffer_load_dwordx4 v[{64+4*i}:{67+4*i}], v23, s[8:11], s22 offen sc1")
        if i < 7:
            a("s_add_u32 s22, s22, 32768")
    a("s_waitcnt vmcnt(0)")
    any_sentinel(a, range(64, 96), 27)
    poll_tail(a, "rec_p3", "rec_p3d")
    stamp(a, 7)
    for st in (4, 8, 16):
        for b in range(0, 32, 2 * st):
            for c in range(4):
                a(f"v_add_f32 v{64+b+c}, v{64+b+c}, v{64+b+st+c}")
    for c in range(4):
        xlane_reduce(a, "v_add_f32", 64 + c, 68 + c)
    a("v_cvt_pk_bf16_f32 v40, v64, v65")
    a("v_cvt_pk_bf16_f32 v41, v66, v67")
    canon(a, 40)
    canon(a, 41)
    a("s_add_u32 s22, s18, 1")
    a("s_lshl_b32 s22, s22, 14")
    a(f"s_add_u32 s22, s22, {WS_MEM}")
    a("v_cmp_gt_u32 vcc, 16, v1")
    a("s_and_saveexec_b64 s[32:33], vcc")
    a("buffer_store_dwordx2 v[40:41], v24, s[8:11], s22 offen sc1")
    a("s_mov_b64 exec, s[32:33]")
    stamp(a, 8)
    a("v_mov_b32 v64, -1")
    a("v_mov_b32 v65, -1")
    a("v_mov_b32 v66, -1")
    a("v_mov_b32 v67, -1")
    a("s_mov_b32 s22, s21")
    for i in range(8):
        a(f"buffer_store_dwordx4 v[64:67], v23, s[8:11], s22 offen sc1")
        if i < 7:
            a("s_add_u32 s22, s22, 32768")
    if STAMP:
        a("s_waitcnt lgkmcnt(0)")
        a("s_lshl_b32 s22, s18, 7")
        a("s_lshl_b32 s23, s2, 13")
        a("s_add_u32 s22, s22, s23")
        a(f"s_add_u32 s22, s22, {WS_DBG}")
        for i in range(9):
            a(f"v_mov_b32 v40, s{50+2*i}")
            a(f"v_mov_b32 v41, 0")
            a(f"buffer_store_dword v40, v41, s[8:11], s22 offen offset:{4*i}")
    a("rec_next:")
    a("s_add_u32 s18, s18, 1")
    a("s_branch rec_step")
    a("rec_worker:")
    import worker
    worker.gen_worker(a)
    a("rec_done:")
    a("s_endpgm")
    return kernel_desc(name, 256, 96)
```

```python
import sys
from gen_common import *
from gemm import *
from rec import *

def gen_ln(a):
    name = "ln_kernel"
    kernel_header(a, name)
    a("s_cmp_ge_u32 s2, 512")
    a("s_cbranch_scc1 ln_done")
    a(f"s_load_dwordx2 s[4:5], s[0:1], {KA['x']}")
    a(f"s_load_dwordx2 s[6:7], s[0:1], {KA['ws']}")
    a("s_waitcnt lgkmcnt(0)")
    srd(a, 8, 4, 5, 4 * MB)
    srd(a, 12, 6, 7, WS_SIZE)
    a("v_lshrrev_b32 v1, 6, v0")
    a("v_and_b32 v2, 63, v0")
    a("s_lshl_b32 s3, s2, 2")
    a("v_add_u32 v1, s3, v1")
    a("v_lshlrev_b32 v1, 11, v1")
    a("v_lshlrev_b32 v3, 4, v2")
    a("v_add_u32 v1, v1, v3")
    a("buffer_load_dwordx4 v[4:7], v1, s[8:11], 0 offen")
    a("buffer_load_dwordx4 v[8:11], v1, s[8:11], 0 offen offset:1024")
    a("v_mov_b32 v40, -1")
    a("v_mov_b32 v41, -1")
    a("v_mov_b32 v42, -1")
    a("v_mov_b32 v43, -1")
    a("s_lshl_b32 s3, s2, 15")
    a(f"s_add_u32 s3, s3, {WS_SYNC}")
    a("v_lshlrev_b32 v44, 4, v0")
    for i in range(8):
        a(f"buffer_store_dwordx4 v[40:43], v44, s[12:15], s3 offen")
        a("s_add_u32 s3, s3, 4096")
    a("s_lshl_b32 s3, s2, 15")
    a(f"s_add_u32 s3, s3, {WS_FQ}")
    for i in range(8):
        a(f"buffer_store_dwordx4 v[40:43], v44, s[12:15], s3 offen")
        a("s_add_u32 s3, s3, 4096")
    a("s_cmp_lg_u32 s2, 0")
    a("s_cbranch_scc1 ln_nocnt")
    a("v_mov_b32 v45, 0")
    a("v_lshlrev_b32 v46, 2, v0")
    a(f"s_mov_b32 s3, {WS_CNT}")
    a("buffer_store_dword v45, v46, s[12:15], s3 offen")
    a("ln_nocnt:")
    a("s_waitcnt vmcnt(16)")
    for i in range(8):
        a(f"v_lshlrev_b32 v{12+2*i}, 16, v{4+i}")
        a(f"v_and_b32 v{13+2*i}, 0xffff0000, v{4+i}")
    for rep, dst in ((0, WS_XN), (1, WS_Y)):
        a("v_add_f32 v28, v12, v13")
        for i in range(2, 16):
            a(f"v_add_f32 v28, v28, v{12+i}")
        wave_sum(a, 28, 29, 16)
        a("v_mov_b32 v28, 0x3a800000")
        a("v_mul_f32 v30, s16, v28")
        a("v_sub_f32 v29, v12, v30")
        a("v_mul_f32 v28, v29, v29")
        for i in range(1, 16):
            a(f"v_sub_f32 v29, v{12+i}, v30")
            a("v_fmac_f32 v28, v29, v29")
        wave_sum(a, 28, 29, 17)
        a("v_mov_b32 v28, 0x3a800000")
        a("v_mul_f32 v31, s17, v28")
        bf16_round(a, 30, 30)
        bf16_round(a, 31, 31)
        a("v_add_f32 v31, 0x3727c5ac, v31")
        bf16_round(a, 31, 31)
        a("v_sqrt_f32 v31, v31")
        a("s_nop 0")
        bf16_round(a, 31, 31)
        a("v_rcp_f32 v31, v31")
        a("s_nop 0")
        for i in range(16):
            a(f"v_sub_f32 v29, v{12+i}, v30")
            bf16_round(a, 29, 29)
            a(f"v_mul_f32 v{12+i}, v29, v31")
        for i in range(8):
            a(f"v_cvt_pk_bf16_f32 v{4+i}, v{12+2*i}, v{13+2*i}")
        a(f"s_mov_b32 s3, {dst}")
        a("buffer_store_dwordx4 v[4:7], v1, s[12:15], s3 offen")
        a("buffer_store_dwordx4 v[8:11], v1, s[12:15], s3 offen offset:1024")
        if rep == 0:
            for i in range(8):
                a(f"v_lshlrev_b32 v{12+2*i}, 16, v{4+i}")
                a(f"v_and_b32 v{13+2*i}, 0xffff0000, v{4+i}")
    a("ln_done:")
    a("s_endpgm")
    return kernel_desc(name, 48, 24)


def main():
    import rec, os
    rec.STAMP = bool(os.environ.get('STAMP'))
    rec.SLEEP = int(os.environ.get('SLEEP', '0'))
    a = Asm()
    descs = []
    launches = []
    body = Asm()
    descs.append(gen_ln(body))
    launches.append("; @launch kernel=ln_kernel grid=(512,1,1) block=(256,1,1) lds=0")
    descs.append(gen_rec(body))
    launches.append(f"; @launch kernel=rec_kernel grid=(256,1,1) block=(512,1,1) lds={REC_LDS}")
    out = []
    out += launches
    out.append('.amdgcn_target "amdgcn-amd-amdhsa--gfx950"')
    out.append(".text")
    out.append(body.text())
    out.append('.section .rodata,"a"')
    for d in descs:
        out.append(".p2align 6")
        out.append(d)
    open(sys.argv[1], "w").write("\n".join(out))


if __name__ == "__main__":
    main()
```

```python
from gen_common import *

L_KX = 0
L_VTX = 8704
L_Q = 17920
L_KM = 20096
L_VTM = 22272
L_OX = 24320
L_RED = 28416
L_END = L_RED + 49152
REC_LDS = 2 * 77824

V_W1 = 128
V_W2 = 224
SPIN_MAX = 1 << 21
SCALE_BITS = 0x3db504f3
LOG2E = 0x3fb8aa3b
STAMP = False
SLEEP = 0


def stamp(a, idx):
    if not STAMP:
        return
    a(f"s_memtime s[{50+2*idx}:{51+2*idx}]")


def any_sentinel(a, regs, vt):
    regs = list(regs)
    a(f"v_max_u32 v{vt}, v{regs[0]}, v{regs[1]}")
    i = 2
    while i < len(regs):
        if i + 1 < len(regs):
            a(f"v_max3_u32 v{vt}, v{vt}, v{regs[i]}, v{regs[i+1]}")
            i += 2
        else:
            a(f"v_max_u32 v{vt}, v{vt}, v{regs[i]}")
            i += 1
    a(f"v_cmp_eq_u32 vcc, -1, v{vt}")


def poll_tail(a, top, done):
    a("s_cbranch_vccz " + done)
    a("s_add_u32 s19, s19, 1")
    if SLEEP:
        a(f"s_sleep {SLEEP}")
    a(f"s_cmp_lt_u32 s19, s20")
    a("s_cbranch_scc1 " + top)
    a("s_mov_b32 s20, 0")
    a(f"{done}:")


def canon(a, v):
    a(f"v_cmp_eq_u32 vcc, -1, v{v}")
    a("s_nop 1")
    a(f"v_cndmask_b32 v{v}, v{v}, v25, vcc")


def xlane_reduce(a, op, v, t):
    a(f"v_mov_b32 v{t}, v{v}")
    a("s_nop 1")
    a(f"v_permlane16_swap_b32 v{v}, v{t}")
    a(f"{op} v{v}, v{v}, v{t}")
    a(f"v_mov_b32 v{t}, v{v}")
    a("s_nop 1")
    a(f"v_permlane32_swap_b32 v{v}, v{t}")
    a(f"{op} v{v}, v{v}, v{t}")


def gen_rec(a):
    name = "rec_kernel"
    kernel_header(a, name)
    a("s_cmp_ge_u32 s2, 256")
    a("s_cbranch_scc1 rec_done")
    a("s_cmp_ge_u32 s2, 128")
    a("s_cbranch_scc1 rec_worker")
    a(f"s_load_dwordx2 s[4:5], s[0:1], {KA['ws']}")
    a(f"s_load_dwordx2 s[6:7], s[0:1], {KA['mem0']}")
    a(f"s_load_dwordx4 s[24:27], s[0:1], {KA['Wq']}")
    a(f"s_load_dwordx4 s[28:31], s[0:1], {KA['Wv']}")
    a("s_and_b32 s16, s2, 7")
    a("s_lshl_b32 s16, s16, 2")
    a("s_lshr_b32 s17, s2, 5")
    a("s_add_u32 s16, s16, s17")
    a("s_bfe_u32 s17, s2, 0x20003")
    a(f"s_mov_b32 s20, {SPIN_MAX}")
    a("v_and_b32 v1, 63, v0")
    a("v_lshrrev_b32 v2, 6, v0")
    a("v_and_b32 v3, 15, v1")
    a("v_lshrrev_b32 v4, 4, v1")
    a("s_waitcnt lgkmcnt(0)")
    srd(a, 8, 4, 5, WS_SIZE)
    a("s_getreg_b32 s21, hwreg(HW_REG_XCC_ID)")
    a("s_and_b32 s21, s21, 15")
    a("v_mov_b32 v5, s21")
    a("s_lshl_b32 s22, s16, 4")
    a("s_lshl_b32 s23, s17, 2")
    a("s_add_u32 s23, s23, s22")
    a(f"s_add_u32 s23, s23, {WS_XID}")
    a("v_mov_b32 v6, s23")
    a("buffer_store_dword v5, v6, s[8:11], 0 offen sc1")
    a(f"s_add_u32 s22, s22, {WS_XID}")
    a("v_mov_b32 v6, s22")
    a("s_mov_b32 s19, 0")
    a("rec_xw:")
    a("buffer_load_dwordx4 v[8:11], v6, s[8:11], 0 offen sc1")
    a("s_waitcnt vmcnt(0)")
    any_sentinel(a, range(8, 12), 7)
    poll_tail(a, "rec_xw", "rec_xd")
    a("v_xor_b32 v9, v8, v9")
    a("v_xor_b32 v10, v8, v10")
    a("v_xor_b32 v11, v8, v11")
    a("v_or3_b32 v9, v9, v10, v11")
    a("s_nop 1")
    a("v_readfirstlane_b32 s34, v9")
    a("v_lshlrev_b32 v5, 7, v2")
    a("v_lshrrev_b32 v6, 2, v1")
    a("v_add_u32 v5, v5, v6")
    a("v_lshlrev_b32 v5, 13, v5")
    a("v_and_b32 v6, 3, v1")
    a("v_lshlrev_b32 v6, 4, v6")
    a("s_lshl_b32 s21, s16, 8")
    a("s_lshl_b32 s22, s17, 6")
    a("s_add_u32 s21, s21, s22")
    a("v_add3_u32 v5, v5, v6, s21")
    a("v_lshlrev_b32 v7, 13, v2")
    a("v_lshlrev_b32 v6, 4, v1")
    a("v_add_u32 v7, v7, v6")
    a("v_lshlrev_b32 v8, 3, v4")
    a("v_lshrrev_b32 v6, 2, v3")
    a("v_add_u32 v8, v8, v6")
    a("v_lshlrev_b32 v8, 6, v8")
    a("v_and_b32 v6, 3, v1")
    a("v_lshlrev_b32 v6, 3, v6")
    a("v_add_u32 v8, v8, v6")
    a("v_lshlrev_b32 v6, 13, v2")
    a("v_add_u32 v8, v8, v6")
    for mat, (lo, hi) in enumerate(((24, 25), (26, 27), (28, 29))):
        srd(a, 12, lo, hi, 8 * MB)
        for i in range(8):
            a(f"s_mov_b32 s21, {i*16*8192}")
            a(f"buffer_load_dwordx4 v[{32+4*i}:{35+4*i}], v5, s[12:15], s21 offen")
        a("s_waitcnt vmcnt(0)")
        for i in range(8):
            a(f"ds_write_b128 v7, v[{32+4*i}:{35+4*i}] offset:{i*1024}")
        a("s_waitcnt lgkmcnt(0)")
        for nt in range(2):
            for ks in range(4):
                for hf in range(2):
                    r = V_W1 + ((mat * 2 + nt) * 4 + ks) * 4 + 2 * hf
                    a(f"ds_read_b64_tr_b16 v[{r}:{r+1}], v8 offset:{(32*ks+4*hf)*64 + nt*32}")
        a("s_waitcnt lgkmcnt(0)")
    srd(a, 12, 30, 31, 8 * MB)
    a("v_lshrrev_b32 v5, 2, v1")
    a("s_lshl_b32 s21, s16, 7")
    a("v_add_u32 v5, s21, v5")
    a("v_lshlrev_b32 v5, 11, v5")
    a("v_and_b32 v6, 3, v1")
    a("v_lshlrev_b32 v6, 4, v6")
    a("v_lshlrev_b32 v9, 6, v2")
    a("s_lshl_b32 s21, s17, 9")
    a("v_add3_u32 v5, v5, v6, s21")
    a("v_add_u32 v5, v5, v9")
    for i in range(8):
        a(f"s_mov_b32 s21, {i*16*2048}")
        a(f"buffer_load_dwordx4 v[{32+4*i}:{35+4*i}], v5, s[12:15], s21 offen")
    a("s_waitcnt vmcnt(0)")
    for i in range(8):
        a(f"ds_write_b128 v7, v[{32+4*i}:{35+4*i}] offset:{i*1024}")
    a("v_lshlrev_b32 v8, 2, v4")
    a("v_lshrrev_b32 v6, 2, v3")
    a("v_add_u32 v8, v8, v6")
    a("v_lshlrev_b32 v8, 6, v8")
    a("v_and_b32 v6, 3, v1")
    a("v_lshlrev_b32 v6, 3, v6")
    a("v_add_u32 v8, v8, v6")
    a("v_lshlrev_b32 v6, 13, v2")
    a("v_add_u32 v8, v8, v6")
    a("s_waitcnt lgkmcnt(0)")
    for t in range(2):
        for s in range(4):
            for hf in range(2):
                r = V_W2 + (t * 4 + s) * 4 + 2 * hf
                a(f"ds_read_b64_tr_b16 v[{r}:{r+1}], v8 offset:{(32*s+16*hf)*64 + t*32}")
    a("s_waitcnt lgkmcnt(0)")
    a("s_barrier")
    a("v_lshlrev_b32 v5, 11, v3")
    a("v_lshlrev_b32 v6, 8, v2")
    a("v_lshlrev_b32 v7, 4, v4")
    a("v_add3_u32 v5, v5, v6, v7")
    a("v_lshlrev_b32 v28, 4, v2")
    a("v_add_u32 v28, v28, v4")
    a("v_lshlrev_b32 v28, 3, v28")
    a("v_add_u32 v28, v28, v3")
    a("v_lshlrev_b32 v28, 4, v28")
    a("v_lshrrev_b32 v6, 4, v0")
    a("v_lshlrev_b32 v6, 13, v6")
    a("v_and_b32 v7, 15, v0")
    a("v_lshlrev_b32 v7, 4, v7")
    a("s_lshl_b32 s21, s16, 8")
    a("v_add3_u32 v6, v6, v7, s21")
    a("v_lshrrev_b32 v7, 4, v0")
    a("v_mul_u32_u24 v7, 272, v7")
    a("v_and_b32 v8, 15, v0")
    a("v_lshlrev_b32 v8, 4, v8")
    a("v_add_u32 v7, v7, v8")
    a("v_lshlrev_b32 v8, 4, v0")
    a("s_lshl_b32 s21, s16, 13")
    a("v_add_u32 v8, s21, v8")
    a("v_lshrrev_b32 v9, 2, v0")
    a("v_mul_u32_u24 v9, 72, v9")
    a("v_and_b32 v10, 3, v0")
    a("v_lshlrev_b32 v10, 4, v10")
    a("v_add_u32 v9, v9, v10")
    a(f"v_add_u32 v9, {L_VTX}, v9")
    a("v_mul_u32_u24 v10, 384, v2")
    a("v_add_u32 v10, v10, v1")
    a("v_lshlrev_b32 v10, 4, v10")
    a(f"v_add_u32 v10, {L_RED}, v10")
    a("v_lshrrev_b32 v11, 7, v0")
    a("v_lshlrev_b32 v11, 1, v11")
    a("v_bfe_u32 v12, v0, 3, 1")
    a("v_add_u32 v11, v11, v12")
    a("v_lshlrev_b32 v11, 6, v11")
    a("v_bfe_u32 v12, v0, 1, 2")
    a("v_lshlrev_b32 v12, 4, v12")
    a("v_add_u32 v11, v11, v12")
    a("v_bfe_u32 v12, v0, 4, 3")
    a("v_add_u32 v11, v11, v12")
    a("v_lshlrev_b32 v11, 4, v11")
    a("v_and_b32 v12, 1, v0")
    a("v_lshlrev_b32 v12, 3, v12")
    a("v_add_u32 v11, v11, v12")
    a(f"v_add_u32 v11, {L_RED}, v11")
    a("v_add_u32 v12, 4, v11")
    a("v_subrev_u32 v14, 0x100, v0")
    a("v_bfe_u32 v15, v14, 7, 1")
    a("v_add_u32 v15, 4, v15")
    a("v_lshlrev_b32 v15, 6, v15")
    a("v_bfe_u32 v16, v14, 5, 2")
    a("v_lshlrev_b32 v16, 4, v16")
    a("v_add_u32 v15, v15, v16")
    a("v_and_b32 v16, 7, v14")
    a("v_add_u32 v15, v15, v16")
    a("v_lshlrev_b32 v15, 4, v15")
    a("v_bfe_u32 v16, v14, 3, 2")
    a("v_lshlrev_b32 v16, 2, v16")
    a("v_add_u32 v15, v15, v16")
    a(f"v_add_u32 v15, {L_RED}, v15")
    a("v_lshlrev_b32 v13, 2, v0")
    a("v_lshrrev_b32 v16, 1, v14")
    a("v_lshlrev_b32 v16, 2, v16")
    a("v_add_u32 v16, 0x400, v16")
    a("v_cmp_le_u32 vcc, 0x100, v0")
    a("s_nop 1")
    a("v_cndmask_b32 v11, v11, v15, vcc")
    a("v_cndmask_b32 v13, v13, v16, vcc")
    a("s_mul_i32 s21, s17, 1536")
    a("v_add_u32 v13, s21, v13")
    a("v_lshlrev_b32 v14, 4, v0")
    a("v_mul_u32_u24 v18, 683, v0")
    a("v_lshrrev_b32 v18, 16, v18")
    a("v_mul_u32_u24 v19, 96, v18")
    a("v_sub_u32 v19, v0, v19")
    a("v_lshrrev_b32 v20, 5, v19")
    a("v_and_b32 v21, 31, v19")
    a("v_lshlrev_b32 v22, 3, v20")
    a("v_lshrrev_b32 v23, 2, v21")
    a("v_add_u32 v22, v22, v23")
    a("v_mul_u32_u24 v22, 272, v22")
    a("v_lshlrev_b32 v23, 6, v18")
    a("v_add_u32 v22, v22, v23")
    a("v_and_b32 v23, 3, v21")
    a("v_lshlrev_b32 v23, 4, v23")
    a("v_add_u32 v22, v22, v23")
    a(f"v_add_u32 v22, {L_Q}, v22")
    a("v_lshlrev_b32 v23, 5, v18")
    a("v_add_u32 v23, v23, v21")
    a("v_lshlrev_b32 v23, 4, v23")
    a(f"v_add_u32 v23, {L_VTM}, v23")
    a("v_cmp_eq_u32 vcc, 2, v20")
    a("s_nop 1")
    a("v_cndmask_b32 v15, v22, v23, vcc")
    a("v_mul_u32_u24 v17, 272, v3")
    a("v_lshlrev_b32 v18, 4, v4")
    a("v_add_u32 v17, v17, v18")
    a("v_lshlrev_b32 v18, 4, v2")
    a("v_add_u32 v18, v18, v3")
    a("v_lshlrev_b32 v19, 4, v18")
    a("v_mul_u32_u24 v18, 72, v18")
    a("v_lshlrev_b32 v20, 3, v4")
    a("v_add_u32 v18, v18, v20")
    a(f"v_add_u32 v18, {L_VTX}, v18")
    a("v_and_b32 v20, 1, v4")
    a("v_lshlrev_b32 v20, 3, v20")
    a("v_add_u32 v19, v19, v20")
    a(f"v_add_u32 v19, {L_VTM}, v19")
    a("v_lshlrev_b32 v16, 3, v0")
    a(f"v_add_u32 v16, {L_OX}, v16")
    a("v_lshlrev_b32 v20, 3, v1")
    a(f"v_add_u32 v20, {L_OX}, v20")
    a("v_lshlrev_b32 v22, 3, v2")
    a("v_add_u32 v22, v22, v4")
    a("v_lshlrev_b32 v22, 3, v22")
    a("v_add_u32 v22, v22, v3")
    a("v_lshlrev_b32 v22, 4, v22")
    a("s_lshl_b32 s21, s17, 5")
    a("s_add_u32 s21, s21, s16")
    a("s_lshl_b32 s21, s21, 13")
    a("v_add_u32 v22, s21, v22")
    a("v_lshlrev_b32 v23, 13, v4")
    a("v_lshlrev_b32 v24, 4, v3")
    a("s_lshl_b32 s21, s17, 18")
    a("s_lshl_b32 s22, s16, 8")
    a("s_add_u32 s21, s21, s22")
    a("v_add3_u32 v23, v23, v24, s21")
    a("v_and_b32 v24, 7, v1")
    a("v_lshlrev_b32 v24, 4, v24")
    a("v_bfe_u32 v25, v1, 3, 1")
    a("v_lshlrev_b32 v25, 3, v25")
    a("s_lshl_b32 s21, s17, 12")
    a("s_lshl_b32 s22, s16, 7")
    a("s_add_u32 s21, s21, s22")
    a("v_add3_u32 v24, v24, v25, s21")
    a("v_mov_b32 v26, -1")
    a("v_mov_b32 v25, 0x7fc07fc0")
    a("s_mov_b32 s18, 0")
    srd(a, 12, 6, 7, 16384)
    a("v_cmp_gt_u32 vcc, 8, v3")
    a("s_and_saveexec_b64 s[32:33], vcc")
    for ks in range(4):
        a(f"buffer_load_dwordx4 v[{32+4*ks}:{35+4*ks}], v5, s[12:15], 0 offen offset:{ks*64}")
    a("s_mov_b64 exec, s[32:33]")
    a("rec_step:")
    stamp(a, 0)
    a("s_and_b32 s21, s18, 3")
    a("s_cmp_lg_u32 s21, 0")
    a("s_cbranch_scc1 rec_kvok")
    a(f"s_add_u32 s21, s18, {WS_CNT}")
    a("v_mov_b32 v27, s21")
    a("s_mov_b32 s19, 0")
    a("rec_kvw:")
    a("buffer_load_dword v29, v27, s[8:11], 0 offen sc1")
    a("s_waitcnt vmcnt(0)")
    a("v_cmp_gt_u32 vcc, 64, v29")
    a("s_cbranch_vccz rec_kvok")
    a("s_sleep 32")
    a("s_add_u32 s19, s19, 1")
    a("s_cmp_lt_u32 s19, 0x80000")
    a("s_cbranch_scc1 rec_kvw")
    a("rec_kvok:")
    a("s_lshl_b32 s21, s18, 18")
    a(f"s_add_u32 s21, s21, {WS_K}")
    a("buffer_load_dwordx4 v[112:115], v6, s[8:11], s21 offen sc1")
    a("s_lshl_b32 s21, s18, 18")
    a(f"s_add_u32 s21, s21, {WS_VT}")
    a("buffer_load_dwordx4 v[120:123], v8, s[8:11], s21 offen sc1")
    a("s_cmp_eq_u32 s18, 0")
    a("s_cbranch_scc1 rec_p1s")
    a("s_lshl_b32 s21, s18, 14")
    a(f"s_add_u32 s21, s21, {WS_MEM}")
    a("s_mov_b32 s19, 0")
    a("v_cmp_gt_u32 vcc, 8, v3")
    a("s_and_saveexec_b64 s[32:33], vcc")
    a("rec_p1:")
    for ks in range(4):
        a(f"buffer_load_dwordx4 v[{32+4*ks}:{35+4*ks}], v28, s[8:11], s21 offen offset:{ks*512} sc1")
    a("s_waitcnt vmcnt(0)")
    any_sentinel(a, range(32, 48), 27)
    poll_tail(a, "rec_p1", "rec_p1d")
    a("s_mov_b64 exec, s[32:33]")
    a("rec_p1s:")
    a("s_waitcnt vmcnt(0)")
    stamp(a, 1)
    for ks in range(4):
        for tl in range(6):
            w = V_W1 + (tl * 4 + ks) * 4
            c = "0" if ks == 0 else f"v[{64+4*tl}:{67+4*tl}]"
            a(f"v_mfma_f32_16x16x32_bf16 v[{64+4*tl}:{67+4*tl}], v[{w}:{w+3}], v[{32+4*ks}:{35+4*ks}], {c}")
    a("ds_write_b128 v7, v[112:115]")
    a("ds_write_b128 v9, v[120:123]")
    a("s_nop 7")
    for tl in range(6):
        a(f"ds_write_b128 v10, v[{64+4*tl}:{67+4*tl}] offset:{tl*1024}")
    a("s_waitcnt lgkmcnt(0)")
    a("s_barrier")
    stamp(a, 2)
    a("s_mul_i32 s21, s18, 196608")
    a("s_mul_i32 s22, s16, 6144")
    a("s_add_u32 s21, s21, s22")
    a(f"s_add_u32 s35, s21, {WS_FQ}")
    a(f"s_add_u32 s21, s21, {WS_QKVM}")
    a("v_readfirstlane_b32 s22, v2")
    a("s_cmp_ge_u32 s22, 4")
    a("s_cbranch_scc1 rec_pubv")
    for wv in range(8):
        a(f"ds_read_b64 v[{32+2*wv}:{33+2*wv}], v11 offset:{wv*6144}")
    a("s_waitcnt lgkmcnt(0)")
    for st in (2, 4, 8):
        for b in range(0, 16, 2 * st):
            a(f"v_add_f32 v{32+b}, v{32+b}, v{32+b+st}")
            a(f"v_add_f32 v{33+b}, v{33+b}, v{33+b+st}")
    a("v_cvt_pk_bf16_f32 v32, v32, v33")
    canon(a, 32)
    a("buffer_store_dword v32, v13, s[8:11], s35 offen")
    a("buffer_store_dword v32, v13, s[8:11], s21 offen sc1")
    a("s_branch rec_pubd")
    a("rec_pubv:")
    for wv in range(8):
        a(f"ds_read_b32 v{32+wv}, v11 offset:{wv*6144}")
    a("s_waitcnt lgkmcnt(0)")
    for st in (1, 2, 4):
        for b in range(0, 8, 2 * st):
            a(f"v_add_f32 v{32+b}, v{32+b}, v{32+b+st}")
    a("s_nop 1")
    a("v_mov_b32_dpp v33, v32 quad_perm:[1,0,3,2] row_mask:0xf bank_mask:0xf")
    a("v_cvt_pk_bf16_f32 v32, v32, v33")
    canon(a, 32)
    a("v_and_b32 v33, 1, v1")
    a("v_cmp_eq_u32 vcc, 0, v33")
    a("s_and_saveexec_b64 s[32:33], vcc")
    a("buffer_store_dword v32, v13, s[8:11], s35 offen")
    a("buffer_store_dword v32, v13, s[8:11], s21 offen sc1")
    a("s_mov_b64 exec, s[32:33]")
    a("rec_pubd:")
    a("s_cmp_eq_u32 s34, 0")
    a("s_cselect_b32 s21, s35, s21")
    for ks in range(4):
        a(f"ds_read_b128 v[{48+4*ks}:{51+4*ks}], v17 offset:{L_KX + ks*64}")
        a(f"ds_read_b128 v[{64+4*ks}:{67+4*ks}], v17 offset:{L_KX + 16*272 + ks*64}")
    a(f"ds_read_b64 v[112:113], v18")
    a(f"ds_read_b64 v[114:115], v18 offset:32")
    a("v_cmp_gt_u32 vcc, 0x180, v0")
    a("s_and_saveexec_b64 s[32:33], vcc")
    a("s_cbranch_execz rec_skip_pub")
    stamp(a, 3)
    a("s_mov_b32 s19, 0")
    a("rec_p2:")
    a("buffer_load_dwordx4 v[32:35], v14, s[8:11], s21 offen sc1")
    a("s_waitcnt vmcnt(0)")
    any_sentinel(a, range(32, 36), 27)
    poll_tail(a, "rec_p2", "rec_p2d")
    a("ds_write_b128 v15, v[32:35]")
    a("rec_skip_pub:")
    a("s_mov_b64 exec, s[32:33]")
    a("s_waitcnt lgkmcnt(0)")
    a("s_barrier")
    stamp(a, 4)
    for ks in range(4):
        a(f"ds_read_b128 v[{32+4*ks}:{35+4*ks}], v17 offset:{L_Q + ks*64}")
        a(f"ds_read_b128 v[{80+4*ks}:{83+4*ks}], v17 offset:{L_KM + ks*64}")
    a(f"ds_read_b64 v[116:117], v19")
    a(f"s_mov_b32 s21, {SCALE_BITS}")
    a(f"s_mov_b32 s22, {LOG2E}")
    for ks in range(4):
        a(f"s_waitcnt lgkmcnt({7-2*ks})")
        for t in range(3):
            c = "0" if ks == 0 else f"v[{96+4*t}:{99+4*t}]"
            a(f"v_mfma_f32_16x16x32_bf16 v[{96+4*t}:{99+4*t}], v[{48+16*t+4*ks}:{51+16*t+4*ks}], v[{32+4*ks}:{35+4*ks}], {c}")
    a("v_cmp_gt_u32 vcc, 2, v4")
    a("v_mov_b32 v27, 0xff800000")
    a("s_nop 7")
    for i in range(6):
        a(f"v_cvt_pk_bf16_f32 v{80+i}, v{96+2*i}, v{97+2*i}")
    for i in range(6):
        a(f"v_lshlrev_b32 v{96+2*i}, 16, v{80+i}")
        a(f"v_and_b32 v{97+2*i}, 0xffff0000, v{80+i}")
    for i in range(12):
        a(f"v_mul_f32 v{96+i}, s21, v{96+i}")
    for i in range(6):
        a(f"v_cvt_pk_bf16_f32 v{80+i}, v{96+2*i}, v{97+2*i}")
    for i in range(6):
        a(f"v_lshlrev_b32 v{96+2*i}, 16, v{80+i}")
        a(f"v_and_b32 v{97+2*i}, 0xffff0000, v{80+i}")
    for i in range(4):
        a(f"v_cndmask_b32 v{104+i}, v27, v{104+i}, vcc")
    a("v_max3_f32 v27, v96, v97, v98")
    a("v_max3_f32 v29, v99, v100, v101")
    a("v_max3_f32 v27, v27, v102, v103")
    a("v_max3_f32 v29, v29, v104, v105")
    a("v_max3_f32 v27, v27, v106, v107")
    a("v_max_f32 v27, v27, v29")
    xlane_reduce(a, "v_max_f32", 27, 29)
    a("v_mul_f32 v27, s22, v27")
    for i in range(12):
        a(f"v_fma_f32 v{96+i}, v{96+i}, s22, -v27")
    for i in range(12):
        a(f"v_exp_f32 v{96+i}, v{96+i}")
    a("s_nop 0")
    a("v_add_f32 v27, v96, v97")
    a("v_add_f32 v29, v98, v99")
    for i in range(4, 12, 2):
        a(f"v_add_f32 v27, v27, v{96+i}")
        a(f"v_add_f32 v29, v29, v{97+i}")
    a("v_add_f32 v27, v27, v29")
    xlane_reduce(a, "v_add_f32", 27, 29)
    a("v_rcp_f32 v27, v27")
    a("s_nop 0")
    for i in range(12):
        a(f"v_mul_f32 v{96+i}, v{96+i}, v27")
    for i in range(6):
        a(f"v_cvt_pk_bf16_f32 v{106+i}, v{96+2*i}, v{97+2*i}") if False else None
    for i in range(6):
        a(f"v_cvt_pk_bf16_f32 v{120+i}, v{96+2*i}, v{97+2*i}")
    a("s_waitcnt lgkmcnt(0)")
    a("s_nop 0")
    a("v_mfma_f32_16x16x32_bf16 v[96:99], v[112:115], v[120:123], 0")
    a("v_mfma_f32_16x16x16_bf16 v[104:107], v[116:117], v[124:125], 0")
    a("s_nop 7")
    a("s_nop 1")
    for i in range(4):
        a(f"v_add_f32 v{96+i}, v{96+i}, v{104+i}")
    a("v_cvt_pk_bf16_f32 v100, v96, v97")
    a("v_cvt_pk_bf16_f32 v101, v98, v99")
    a("ds_write_b64 v16, v[100:101]")
    if STAMP:
        a("s_cmp_lg_u32 s18, 0")
        a("s_cbranch_scc1 rec_nodbg")
        a("v_lshlrev_b32 v102, 3, v0")
        a("s_lshl_b32 s23, s2, 12")
        a(f"s_add_u32 s23, s23, {WS_DBG + 4*MB}")
        a("buffer_store_dwordx2 v[100:101], v102, s[8:11], s23 offen")
        a("rec_nodbg:")
    a("s_waitcnt lgkmcnt(0)")
    a("s_barrier")
    stamp(a, 5)
    a("s_cmp_eq_u32 s18, 63")
    a("s_cbranch_scc1 rec_done")
    for et in range(8):
        a(f"ds_read_b64 v[{40+2*et}:{41+2*et}], v20 offset:{et*512}")
    a("s_and_b32 s21, s18, 1")
    a("s_lshl_b32 s21, s21, 20")
    a(f"s_add_u32 s21, s21, {WS_PART}")
    for s in range(4):
        a(f"s_waitcnt lgkmcnt({6-2*s})")
        for t in range(2):
            w = V_W2 + (t * 4 + s) * 4
            c = "0" if s == 0 else f"v[{56+4*t}:{59+4*t}]"
            a(f"v_mfma_f32_16x16x32_bf16 v[{56+4*t}:{59+4*t}], v[{w}:{w+3}], v[{40+4*s}:{43+4*s}], {c}")
    a("s_nop 7")
    a("s_nop 1")
    for i in range(8):
        a(f"v_cmp_eq_u32 vcc, -1, v{56+i}")
        a("s_nop 1")
        a(f"v_cndmask_b32 v{56+i}, v{56+i}, v25, vcc")
    a("v_cmp_gt_u32 vcc, 8, v3")
    a("s_and_saveexec_b64 s[32:33], vcc")
    a("buffer_store_dwordx4 v[56:59], v22, s[8:11], s21 offen sc1")
    a("buffer_store_dwordx4 v[60:63], v22, s[8:11], s21 offen offset:512 sc1")
    a("s_mov_b64 exec, s[32:33]")
    stamp(a, 6)
    a("v_readfirstlane_b32 s22, v2")
    a("s_cmp_lg_u32 s22, 0")
    a("s_cbranch_scc1 rec_next")
    a("s_mov_b32 s19, 0")
    a("rec_p3:")
    a("s_mov_b32 s22, s21")
    for i in range(8):
        a(f"buffer_load_dwordx4 v[{64+4*i}:{67+4*i}], v23, s[8:11], s22 offen sc1")
        if i < 7:
            a("s_add_u32 s22, s22, 32768")
    a("s_waitcnt vmcnt(0)")
    any_sentinel(a, range(64, 96), 27)
    poll_tail(a, "rec_p3", "rec_p3d")
    stamp(a, 7)
    for st in (4, 8, 16):
        for b in range(0, 32, 2 * st):
            for c in range(4):
                a(f"v_add_f32 v{64+b+c}, v{64+b+c}, v{64+b+st+c}")
    for c in range(4):
        xlane_reduce(a, "v_add_f32", 64 + c, 68 + c)
    a("v_cvt_pk_bf16_f32 v40, v64, v65")
    a("v_cvt_pk_bf16_f32 v41, v66, v67")
    canon(a, 40)
    canon(a, 41)
    a("s_add_u32 s22, s18, 1")
    a("s_lshl_b32 s22, s22, 14")
    a(f"s_add_u32 s22, s22, {WS_MEM}")
    a("v_cmp_gt_u32 vcc, 16, v1")
    a("s_and_saveexec_b64 s[32:33], vcc")
    a("buffer_store_dwordx2 v[40:41], v24, s[8:11], s22 offen sc1")
    a("s_mov_b64 exec, s[32:33]")
    stamp(a, 8)
    a("v_mov_b32 v64, -1")
    a("v_mov_b32 v65, -1")
    a("v_mov_b32 v66, -1")
    a("v_mov_b32 v67, -1")
    a("s_mov_b32 s22, s21")
    for i in range(8):
        a(f"buffer_store_dwordx4 v[64:67], v23, s[8:11], s22 offen sc1")
        if i < 7:
            a("s_add_u32 s22, s22, 32768")
    if STAMP:
        a("s_waitcnt lgkmcnt(0)")
        a("s_lshl_b32 s22, s18, 7")
        a("s_lshl_b32 s23, s2, 13")
        a("s_add_u32 s22, s22, s23")
        a(f"s_add_u32 s22, s22, {WS_DBG}")
        for i in range(9):
            a(f"v_mov_b32 v40, s{50+2*i}")
            a(f"v_mov_b32 v41, 0")
            a(f"buffer_store_dword v40, v41, s[8:11], s22 offen offset:{4*i}")
    a("rec_next:")
    a("s_add_u32 s18, s18, 1")
    a("s_branch rec_step")
    a("rec_worker:")
    import worker
    worker.gen_worker(a)
    a("rec_done:")
    a("s_endpgm")
    return kernel_desc(name, 256, 96)
```
